```python
import torch

def _softmax(x, axis=-1):
    return torch.softmax(x, dim=axis)
def _gelu(x):
    return torch.nn.functional.gelu(x, approximate="tanh")
def _silu(x):
    return torch.nn.functional.silu(x)
def _sigmoid(x):
    return torch.sigmoid(x)
def _layernorm(x, axis=-1, eps=1e-5):
    m = x.mean(dim=axis, keepdim=True)
    v = x.var(dim=axis, keepdim=True, unbiased=False)
    return (x - m) / torch.sqrt(v + eps)
def _scatter_add(tgt, idx, src, axis=0):
    return tgt.clone().index_add_(axis, idx, src)
def _segment_sum(src, seg, n):
    out = torch.zeros((n,) + src.shape[1:], dtype=src.dtype)
    return out.index_add_(0, seg, src)
def _pad(x, pw):
    flat = tuple(v for pair in reversed(pw) for v in pair)
    return torch.nn.functional.pad(x, flat)

kernel_name = 'standalone__window_attn_swin_v2__vision'

def setup_inputs():

    _w = (lambda a: (lambda t: t.to(torch.bfloat16) if t.is_floating_point() else t)(torch.as_tensor(a)))
    win = 7
    H = W = (384 // win) * win
    C = 96
    nh = 4
    shift = win // 2
    coords = torch.stack(torch.meshgrid(torch.arange(win), torch.arange(win), indexing="ij"), -1).reshape(-1, 2)
    rel = coords[:, None, :] - coords[None, :, :]
    rel_idx = ((rel[..., 0] + win - 1) * (2 * win - 1) + (rel[..., 1] + win - 1)).to(torch.int64)
    tab = torch.stack(torch.meshgrid(torch.arange(1 - win, win), torch.arange(1 - win, win), indexing="ij"), -1).reshape(-1, 2).to(float)
    tab = (lambda _x: torch.sign(torch.as_tensor(_x)))(tab) * (lambda _x: torch.log1p(torch.as_tensor(_x)))(torch.abs(tab))
    img = torch.zeros((H, W), dtype=torch.int64)
    cnt = 0
    for hs in (slice(0, H - win), slice(H - win, H - shift), slice(H - shift, H)):
        for ws in (slice(0, W - win), slice(W - win, W - shift), slice(W - shift, W)):
            img[hs, ws] = cnt; cnt += 1
    mw = img.reshape(H // win, win, W // win, win).permute(0, 2, 1, 3).reshape(-1, win * win)
    mask = (mw[:, :, None] != mw[:, None, :]).to(float) * (-100.0)
    return {
        "x": _w((lambda *s: torch.randn(*s, dtype=torch.bfloat16) * 0.05)(1, H, W, C)),
        "wqkv": _w((lambda *s: torch.randn(*s, dtype=torch.bfloat16) * 0.8)(C, 3 * C)),
        "wo": _w((lambda *s: torch.randn(*s, dtype=torch.bfloat16) * 0.05)(C, C)),
        "logit_scale": _w((lambda *s: torch.randn(*s, dtype=torch.bfloat16) * 0.8)(nh)),
        "cpb_w1": _w((lambda *s: torch.randn(*s, dtype=torch.bfloat16) * 0.8)(2, 4 * nh)),
        "cpb_w2": _w((lambda *s: torch.randn(*s, dtype=torch.bfloat16) * 0.8)(4 * nh, nh)),
        "rel_coords": _w(tab),
        "rel_idx": _w(rel_idx),
        "attn_mask": _w(mask),
    }

def reference(x, wqkv, wo, logit_scale, cpb_w1, cpb_w2, rel_coords, rel_idx, attn_mask):
    B, H, W, C = x.shape
    win = 7
    nh = 4
    hd = C // nh
    shift = win // 2
    ww = win * win
    nH, nW = H // win, W // win
    xs = torch.roll(x, (-shift, -shift), (1, 2))
    xw = (lambda x, *d: x.permute(*d))(xs.reshape(B, nH, win, nW, win, C), 0, 1, 3, 2, 4, 5).reshape(B * nH * nW, ww, C)
    qkv = (lambda x, *d: x.permute(*d))((xw @ wqkv).reshape(B * nH * nW, ww, 3, nh, hd), 2, 0, 3, 1, 4)
    q, k, v = qkv[0], qkv[1], qkv[2]
    qn = q * (torch.einsum("bhqd,bhqd->bhq", q, q)[..., None] + 1e-12) ** -0.5
    kn = k * (torch.einsum("bhkd,bhkd->bhk", k, k)[..., None] + 1e-12) ** -0.5
    logits = torch.einsum("bhqd,bhkd->bhqk", qn, kn)
    tau = torch.exp(torch.clip(logit_scale, -100.0, 4.6052))
    logits = logits * tau[None, :, None, None]
    hcpb = rel_coords @ cpb_w1
    hcpb = torch.where(hcpb > 0, hcpb, hcpb * 0)
    bias_tab = 16.0 * _sigmoid(hcpb @ cpb_w2)
    bias = (lambda x, *d: x.permute(*d))(bias_tab[rel_idx], 2, 0, 1)
    logits = logits.reshape(B, nH * nW, nh, ww, ww) + bias[None, None, :, :, :] + attn_mask[None, :, None, :, :]
    p = _softmax(logits.reshape(B * nH * nW, nh, ww, ww), axis=-1)
    o = (lambda x, *d: x.permute(*d))(torch.einsum("bhqk,bhkd->bhqd", p, v), 0, 2, 1, 3).reshape(B * nH * nW, ww, C) @ wo
    o = (lambda x, *d: x.permute(*d))(o.reshape(B, nH, nW, win, win, C), 0, 1, 3, 2, 4, 5).reshape(B, H, W, C)
    o = torch.roll(o, (shift, shift), (1, 2))
    return _layernorm(o, axis=-1)
```

```python
import re


def vr(i, n=1):
    return f"v{i}" if n == 1 else f"v[{i}:{i+n-1}]"


def sr(i, n=1):
    return f"s{i}" if n == 1 else f"s[{i}:{i+n-1}]"


def V(i, n=1):
    return [f"v{k}" for k in range(i, i + n)]


def S(i, n=1):
    return [f"s{k}" for k in range(i, i + n)]


_REG_RE = re.compile(r"^(-)?([vs])(\d+)$|^(-)?([vs])\[(\d+):(\d+)\]$")


def regs_of(op):
    op = op.strip()
    if op in ("vcc", "exec", "m0", "scc"):
        return [op]
    m = _REG_RE.match(op)
    if not m:
        return []
    if m.group(2):
        return [f"{m.group(2)}{m.group(3)}"]
    return [f"{m.group(5)}{k}" for k in range(int(m.group(6)), int(m.group(7)) + 1)]


class I:
    __slots__ = ("text", "kind", "rd", "wr", "crd", "mem", "sub", "dpp", "prio", "idx")

    def __init__(self, text, kind, rd=(), wr=(), crd=(), mem=(), sub=None, dpp=False):
        self.text = text
        self.kind = kind
        self.rd = list(rd)
        self.wr = list(wr)
        self.crd = list(crd)
        self.mem = list(mem)
        self.sub = sub
        self.dpp = dpp
        self.prio = 0
        self.idx = 0

    def __repr__(self):
        return f"<{self.kind}: {self.text}>"


TRANS = {"v_exp_f32", "v_rcp_f32", "v_rsq_f32", "v_log_f32", "v_sqrt_f32"}


class Block:
    def __init__(self):
        self.ins = []

    def add(self, i):
        self.ins.append(i)
        return i

    def extend(self, other):
        self.ins.extend(other.ins)

    def valu(self, op, dst, *src, mod="", rmw=False, extra_rd=(), extra_wr=(), dpp=False):
        rd = []
        for s in src:
            rd += regs_of(str(s))
        wr = regs_of(dst)
        if rmw:
            rd += wr
        rd += list(extra_rd)
        wr += list(extra_wr)
        base = op.replace("_e32", "").replace("_e64", "")
        kind = "trans" if base in TRANS else "valu"
        if op.startswith("v_permlane"):
            kind = "perm"
            rd += wr
            wr += regs_of(src[0])
        text = f"{op} {dst}, " + ", ".join(str(s) for s in src) + (" " + mod if mod else "")
        return self.add(I(text, kind, rd, wr, dpp=dpp or "_dpp" in op))

    def salu(self, op, dst, *src, scc=True, rscc=False):
        rd = []
        for s in src:
            rd += regs_of(str(s))
        wr = regs_of(dst)
        if scc:
            wr.append("scc")
        if rscc:
            rd.append("scc")
        text = f"{op} {dst}" + "".join(", " + str(s) for s in src)
        return self.add(I(text, "salu", rd, wr))

    def smov(self, dst, src):
        op = "s_mov_b64" if (len(regs_of(dst)) == 2 or dst in ("exec", "vcc")) else "s_mov_b32"
        return self.salu(op, dst, src, scc=False)

    def scmp(self, op, a, b):
        rd = regs_of(str(a)) + regs_of(str(b))
        return self.add(I(f"{op} {a}, {b}", "salu", rd, ["scc"]))

    def vcmp(self, op, dst, a, b):
        rd = regs_of(str(a)) + regs_of(str(b))
        return self.add(I(f"{op} {dst}, {a}, {b}", "valu", rd, regs_of(dst)))

    def readfirstlane(self, sdst, vsrc):
        return self.add(I(f"v_readfirstlane_b32 {sdst}, {vsrc}", "rdlane", regs_of(vsrc), regs_of(sdst)))

    def mfma(self, d, a, b, c, shape="16x16x32"):
        if shape == "16x16x32":
            op, n, kind = "v_mfma_f32_16x16x32_bf16", 4, "mfma"
        elif shape == "16x16x16":
            op, n, kind = "v_mfma_f32_16x16x16_bf16", 2, "mfma"
        elif shape == "f32":
            op, n, kind = "v_mfma_f32_16x16x4_f32", 1, "mfmaf"
        if isinstance(c, int):
            cs, crd = vr(c, 4), V(c, 4)
        else:
            cs, crd = c, []
        text = f"{op} {vr(d,4)}, {vr(a,n)}, {vr(b,n)}, {cs}"
        return self.add(I(text, kind, V(a, n) + V(b, n), V(d, 4), crd=crd))

    def dsr(self, op, dst, n, addr, off=0, mem=()):
        text = f"{op} {vr(dst,n)}, {vr(addr)}" + (f" offset:{off}" if off else "")
        assert 0 <= off < 65536
        return self.add(I(text, "dsr", V(addr), V(dst, n), mem=[(m, "r") for m in mem]))

    def dsw(self, op, addr, src, n, off=0, mem=()):
        text = f"{op} {vr(addr)}, {vr(src,n)}" + (f" offset:{off}" if off else "")
        assert 0 <= off < 65536
        return self.add(I(text, "dsw", V(addr) + V(src, n), [], mem=[(m, "w") for m in mem]))

    def bload(self, dst, n, voff, srd, soff="0", off=0, flags=""):
        op = {1: "buffer_load_dword", 2: "buffer_load_dwordx2", 4: "buffer_load_dwordx4"}[n]
        text = f"{op} {vr(dst,n)}, {vr(voff)}, {sr(srd,4)}, {soff} offen" + (f" offset:{off}" if off else "") + (" " + flags if flags else "")
        assert 0 <= off < 4096
        return self.add(I(text, "vml", V(voff) + S(srd, 4) + regs_of(str(soff)), V(dst, n), mem=[("vmem", "w")]))

    def bstore(self, src, n, voff, srd, soff="0", off=0, flags=""):
        op = {1: "buffer_store_dword", 2: "buffer_store_dwordx2", 4: "buffer_store_dwordx4"}[n]
        text = f"{op} {vr(src,n)}, {vr(voff)}, {sr(srd,4)}, {soff} offen" + (f" offset:{off}" if off else "") + (" " + flags if flags else "")
        assert 0 <= off < 4096
        return self.add(I(text, "vms", V(voff) + V(src, n) + S(srd, 4) + regs_of(str(soff)), [], mem=[("vmem", "w")]))

    def dma(self, voff, srd, soff="0", flags=""):
        text = f"buffer_load_dwordx4 {vr(voff)}, {sr(srd,4)}, {soff} offen" + (" " + flags if flags else "") + " lds"
        return self.add(I(text, "dma", V(voff) + S(srd, 4) + regs_of(str(soff)) + ["m0"], [], mem=[("vmem", "w")]))

    def sload(self, dst, n, base, off):
        op = "s_load_dword" + (f"x{n}" if n > 1 else "")
        return self.add(I(f"{op} {sr(dst,n)}, {sr(base,2)}, {off:#x}", "smem", S(base, 2), S(dst, n)))

    def raw(self, text, kind="other", rd=(), wr=()):
        return self.add(I(text, kind, rd, wr))

    def wait(self, text):
        return self.add(I(f"s_waitcnt {text}", "wait"))

    def fence(self):
        return self.add(I("", "fence"))

    def label(self, name):
        self.fence()
        return self.add(I(f"{name}:", "label"))

    def branch(self, op, target):
        self.fence()
        return self.add(I(f"{op} {target}", "branch", rd=["scc"]))

    def group(self, blk):
        rd, wr, mem = [], [], []
        written = set()
        for i in blk.ins:
            for r in i.rd + i.crd:
                if r not in written:
                    rd.append(r)
            for w in i.wr:
                written.add(w)
                wr.append(w)
            mem += i.mem
        rd = [r for r in rd if r not in ("exec",)]
        wr = [w for w in wr if w not in ("exec", "scc")]
        g = I("", "group", rd, wr, mem=mem, sub=list(blk.ins))
        return self.add(g)

    def comment(self, t):
        return self.add(I(f"; {t}", "comment"))


ISSUE = {"valu": 4, "trans": 8, "perm": 8, "mfma": 8, "mfmaf": 8, "dsr": 4, "dsw": 4, "vml": 4, "vms": 4,
         "dma": 4, "salu": 4, "rdlane": 4, "other": 4, "smem": 4}
PIPE = {"mfma": 16, "mfmaf": 32}


def _cost(i):
    if i.kind == "group":
        return sum(ISSUE.get(k.kind, 4) for k in i.sub)
    return ISSUE.get(i.kind, 4)


def _ekind(i):
    if i.kind == "group":
        ks = {k.kind for k in i.sub}
        if "dsr" in ks:
            return "dsr"
        if "trans" in ks:
            return "trans"
        if "valu" in ks:
            return "valu"
        return "dsw"
    return i.kind


def schedule(ins, dslat=110):
    ins = [i for i in ins if i.kind != "comment"]
    n = len(ins)
    for k, i in enumerate(ins):
        assert i.kind not in ("label", "branch", "fence", "wait"), i
        i.idx = k
    preds = [dict() for _ in range(n)]
    lastw, readers = {}, {}
    memw, memr = {}, {}

    def edge(a, b, lat):
        if a == b:
            return
        if preds[b].get(a, -1) < lat:
            preds[b][a] = lat

    for k, i in enumerate(ins):
        ck = _ekind(i)
        for r in i.rd + i.crd:
            if r in lastw:
                p = ins[lastw[r]]
                pk = _ekind(p)
                if pk in ("mfma", "mfmaf"):
                    if r in i.crd and r not in i.rd and i.crd == p.wr and pk == ck:
                        lat = PIPE[pk]
                    else:
                        lat = 40 if pk == "mfma" else 52
                elif pk == "dsr":
                    lat = dslat
                elif pk == "vml":
                    lat = 600
                elif pk in ("valu", "trans", "perm"):
                    lat = _cost(p)
                    if ck in ("mfma", "mfmaf", "perm") or i.dpp:
                        lat += 8
                    elif pk == "trans":
                        lat += 4
                    elif r[0] == "s" or r == "vcc":
                        lat += 8
                else:
                    lat = _cost(p)
                edge(lastw[r], k, lat)
        for w in i.wr:
            if w in lastw:
                p = ins[lastw[w]]
                pk = _ekind(p)
                lat = _cost(p)
                if pk in ("mfma", "mfmaf") and not (ck == pk and i.crd == p.wr):
                    lat = 40 if pk == "mfma" else 52
                elif pk == "dsr":
                    lat = dslat
                edge(lastw[w], k, lat)
            for rk in readers.get(w, []):
                p = ins[rk]
                lat = _cost(p)
                if p.kind in ("mfma",) and w in p.crd and ck not in ("mfma", "mfmaf"):
                    lat = 20
                if p.kind == "vms":
                    lat = 12
                edge(rk, k, lat)
        for tag, rw in i.mem:
            if tag in memw:
                edge(memw[tag], k, _cost(ins[memw[tag]]))
            if rw == "w":
                for rk in memr.get(tag, []):
                    edge(rk, k, _cost(ins[rk]))
        for r in i.rd + i.crd:
            readers.setdefault(r, []).append(k)
        for w in i.wr:
            lastw[w] = k
            readers[w] = []
        for tag, rw in i.mem:
            if rw == "w":
                memw[tag] = k
                memr[tag] = []
            else:
                memr.setdefault(tag, []).append(k)
    succs = [[] for _ in range(n)]
    for b in range(n):
        for a, lat in preds[b].items():
            succs[a].append((b, lat))
    prio = [0] * n
    for k in range(n - 1, -1, -1):
        prio[k] = _cost(ins[k]) + max([lat - _cost(ins[k]) + prio[b] for b, lat in succs[k]] + [0])
    npred = [len(p) for p in preds]
    ready_t = [0] * n
    ready = [k for k in range(n) if npred[k] == 0]
    t = 0
    pipe_free = 0
    out = []
    while ready:
        def est(k):
            e = ready_t[k]
            if ins[k].kind in PIPE:
                e = max(e, pipe_free)
            return e
        cand = [k for k in ready if est(k) <= t]
        if not cand:
            t = min(est(k) for k in ready)
            cand = [k for k in ready if est(k) <= t]
        k = max(cand, key=lambda k: (prio[k] + ins[k].prio, -k))
        ready.remove(k)
        out.append(ins[k])
        if ins[k].kind in PIPE:
            pipe_free = t + PIPE[ins[k].kind]
        for b, lat in succs[k]:
            ready_t[b] = max(ready_t[b], t + lat)
            npred[b] -= 1
            if npred[b] == 0:
                ready.append(b)
        t += _cost(ins[k])
    assert len(out) == n
    return out, t


def finalize(ins):
    flat = []
    for i in ins:
        if i.kind == "group":
            flat.extend(i.sub)
        else:
            flat.append(i)
    out = []
    pos = 0
    vw = {}
    mw = {}
    mc = {}
    sw = {}
    m0w = [-100]
    std = {}
    ds = []
    nops = 0

    def emit(i):
        nonlocal pos
        out.append(i)
        if i.kind in ("comment", "label", "fence"):
            return
        pos += 1

    def pad(k):
        nonlocal pos, nops
        while k > 0:
            c = min(k, 16)
            out.append(I(f"s_nop {c-1}", "nop"))
            pos += c
            nops += c
            k -= c

    for i in flat:
        if i.kind == "fence":
            if ds:
                emit(I("s_waitcnt lgkmcnt(0)", "wait"))
                ds.clear()
            need = 0
            for r, (p, k, d) in mw.items():
                need = max(need, (8 if k == "mfma" else 10) - (pos - p - 1))
            for r, (p, k) in vw.items():
                need = max(need, 2 - (pos - p - 1))
            for r, p in sw.items():
                need = max(need, 5 - (pos - p - 1))
            for r, p in std.items():
                need = max(need, 2 - (pos - p - 1))
            need = max(need, 1 - (pos - m0w[0] - 1))
            pad(need)
            mw.clear(); vw.clear(); sw.clear(); std.clear(); mc.clear()
            continue
        if i.kind in ("comment", "label"):
            emit(i)
            continue
        if i.kind == "wait":
            if "lgkmcnt(0)" in i.text:
                ds.clear()
            emit(i)
            continue
        touched = set(i.rd) | set(i.crd) | set(i.wr)
        kmax = -1
        for k, dst in enumerate(ds):
            if dst & touched:
                kmax = k
        if kmax >= 0:
            left = len(ds) - 1 - kmax
            left = min(left, 15)
            emit(I(f"s_waitcnt lgkmcnt({left})", "wait"))
            del ds[: len(ds) - left]
        if i.kind == "smem":
            assert not ds, "smem mixed with outstanding DS"
        need = 0

        def req(p, ws):
            nonlocal need
            need = max(need, ws - (pos - p - 1))

        isvalu = i.kind in ("valu", "trans", "perm", "rdlane")
        ismfma = i.kind in ("mfma", "mfmaf")
        ismem = i.kind in ("dsr", "dsw", "vml", "vms", "dma")
        for r in i.rd + i.crd:
            if r[0] == "v" and r != "vcc":
                if r in vw:
                    p, k = vw[r]
                    if ismfma:
                        req(p, 2)
                    elif i.kind == "perm" or i.dpp:
                        req(p, 2)
                    elif i.kind == "rdlane":
                        req(p, 1)
                    elif k == "trans" and i.kind == "valu":
                        req(p, 1)
                if r in mw:
                    p, k, d = mw[r]
                    if ismfma and r in i.crd and r not in i.rd:
                        if i.crd == d and i.kind == k:
                            pass
                        elif k == "mfma":
                            req(p, 6)
                        else:
                            req(p, 8 if i.kind == "mfmaf" else 0)
                    else:
                        req(p, 8 if k == "mfma" else 10)
            else:
                if r in sw:
                    if isvalu:
                        req(sw[r], 2)
                    elif ismem:
                        req(sw[r], 5)
                    else:
                        req(sw[r], 1)
                if r == "m0" and i.kind == "dma":
                    req(m0w[0], 1)
        for w in i.wr:
            if w[0] == "v" and w != "vcc":
                if w in mw and not ismfma:
                    p, k, d = mw[w]
                    req(p, 8 if k == "mfma" else 10)
                if w in mw and ismfma:
                    p, k, d = mw[w]
                    if not (i.crd == d and i.kind == k):
                        req(p, 6 if k == "mfma" else 8)
                if w in mc and not ismfma:
                    req(mc[w], 3)
                if w in std:
                    req(std[w], 2)
        import os
        if os.environ.get("PKNOP") and ismfma and need <= 0 and out and out[-1].text.startswith("v_pk_"):
            need = int(os.environ["PKNOP"])
        pad(need)
        emit(i)
        p = pos - 1
        for w in i.wr:
            if w[0] == "v" and w != "vcc":
                vw.pop(w, None)
                mw.pop(w, None)
                if isvalu:
                    vw[w] = (p, i.kind)
                elif ismfma:
                    mw[w] = (p, i.kind, list(i.wr))
            elif w == "m0":
                m0w[0] = p
            elif isvalu:
                sw[w] = p
            else:
                sw.pop(w, None)
        if i.kind == "mfma":
            for r in i.crd:
                mc[r] = p
        if i.kind == "vms":
            for r in i.rd:
                if r[0] == "v":
                    std[r] = p
        if i.kind == "dsr":
            ds.append(set(i.wr))
        elif i.kind == "dsw":
            ds.append(set())
    return out, nops


def render(ins):
    lines = []
    for i in ins:
        if i.kind == "fence":
            continue
        if i.kind == "label":
            lines.append(i.text)
        else:
            lines.append("    " + i.text)
    return "\n".join(lines)
```

```python
import struct
import sys
from asmdsl import *

KNAME = "standalone__window_attn_swin_v2__vision_kernel"
NWG = 486
XBYTES = 378 * 378 * 96 * 2


def f32(x):
    return "0x%08x" % struct.unpack("<I", struct.pack("<f", x))[0]


LOG2E = 1.4426950408889634
import os
DEBUG = bool(os.environ.get("DEBUG"))

RAW = 0
WOF = 0
OB0 = 18432
OB1 = 30720
XB1 = 43008
XB0 = 55296
TAB = 64512
E3 = 67584
E3W = 1920
EST = 320
DUM = 75264
OFFS = 77184
LDS_BYTES = 79232

sX, sOUT, sW, sWO, sRI, sRC = 4, 8, 12, 16, 20, 24
sH, sWY, sWX0, sI = 28, 29, 30, 31
sXOFF, sSOFF, sT = 32, 33, 34
sT1 = 35
sEPSQ, sEPSL, sM33, sM1 = 36, 38, 40, 42
sSLOW, sTAU, sDOB, sDXB = 44, 45, 46, 47
sKA = 48
sOUTP = 64
sLS = 66
sW1 = 68
sW2A = 84
sFY2, sFX5 = 100, 101
sXB, sO64, sT2, sT3, sTILE, sEX = 48, 49, 50, 51, 52, 54

WA = 0
WV = 36
CB = 60
CX = 96
vXADDR, vOW64, vOW32, vE3A, vPV, vDMAA, vDMAB = CX + 1, CX + 3, CX + 5, CX + 7, CX + 9, CX + 11, CX + 13
SEL = 112
QT = 114
KT = 130
VT = 146
PT = 162
T = 178
NVGPR = 256
XS = [T, T + 12]
ACC = [T + 24, T + 44]
NB = [T + 64, T + 66]
ND = [T + 68, T + 72]
SS = [T, T + 44]
OO = [T + 16, T + 60]


def wa(mt, ks):
    return WA + (mt * 3 + ks) * 4


def wv(nt, ks):
    return WV + (nt * 3 + ks) * 4


def pk_mul_lo(b, d, sc):
    b.valu("v_pk_mul_f32", vr(d, 2), vr(d, 2), vr(sc, 2), mod="op_sel_hi:[1,0]")


def cvt(b, d, lo, hi):
    b.valu("v_cvt_pk_bf16_f32", vr(d), lo if isinstance(lo, str) else vr(lo), hi if isinstance(hi, str) else vr(hi))


def proj_tile(b, xs, a, nb, nd, qd, kd, vd0, vd1):
    for ks in range(3):
        for mt in range(3):
            b.mfma(a + 4 * mt, wa(mt, ks), xs + 4 * ks, "0" if ks == 0 else a + 4 * mt)
        for nt in range(2):
            b.mfma(a + 12 + 4 * nt, xs + 4 * ks, wv(nt, ks), "0" if ks == 0 else a + 12 + 4 * nt)
    for base, regs in ((nd, (0, 2, 8)), (nd + 2, (4, 6, 10))):
        for k, r in enumerate(regs):
            b.valu("v_pk_fma_f32", vr(base, 2), vr(a + r, 2), vr(a + r, 2), sr(sEPSQ, 2) if k == 0 else vr(base, 2))
    cvt(b, nb, nd, nd + 1)
    cvt(b, nb + 1, nd + 2, nd + 3)
    b.mfma(nd, SEL, nb, "0", shape="16x16x16")
    b.valu("v_rsq_f32", vr(nd), vr(nd))
    b.valu("v_rsq_f32", vr(nd + 2), vr(nd + 2))
    b.valu("v_mul_f32", vr(nd), sr(sTAU), vr(nd))
    for r in (4, 6, 10):
        pk_mul_lo(b, a + r, nd + 2)
    for r in (0, 2, 8):
        pk_mul_lo(b, a + r, nd)
    for k, r in enumerate((4, 6, 10)):
        cvt(b, kd + k, a + r, a + r + 1)
    for k, r in enumerate((0, 2, 8)):
        cvt(b, qd + k, a + r, a + r + 1)
    if vd0 is not None:
        cvt(b, vd0, a + 12, a + 13)
        cvt(b, vd0 + 1, a + 14, a + 15)
        g = Block()
        g.smov("exec", sr(sM33, 2))
        cvt(g, vd1, a + 16, a + 17)
        cvt(g, vd1 + 1, a + 18, a + 19)
        g.smov("exec", "-1")
        gi = b.group(g)
        gi.rd += V(vd1, 2)


def pv_and_out(b, p, o, off, masked):
    b.mfma(o, VT + 0, p, "0")
    b.mfma(o + 4, VT + 8, p, "0")
    b.mfma(o, VT + 4, p + 4, o)
    b.mfma(o + 4, VT + 12, p + 4, o + 4)
    b.valu("v_rcp_f32", vr(o + 6), vr(o + 6))
    for r in (0, 2, 4):
        pk_mul_lo(b, o + r, o + 6)
    cvt(b, o, o, o + 1)
    cvt(b, o + 1, o + 2, o + 3)
    cvt(b, o + 4, o + 4, o + 5)
    if masked:
        g = Block()
        g.smov("exec", sr(sEX, 2))
        g.dsw("ds_write_b64", vOW64, o, 2, off, mem=["ob"])
        g.dsw("ds_write_b32", vOW32, o + 4, 1, off, mem=["ob"])
        g.smov("exec", "-1")
        b.group(g)
    else:
        b.dsw("ds_write_b64", vOW64, o, 2, off)
        b.dsw("ds_write_b32", vOW32, o + 4, 1, off)


def xmax(b, m, t, op):
    b.valu("v_mov_b32", vr(t), vr(m))
    b.valu(op, vr(t), vr(m))
    b.valu("v_max_f32", vr(m), vr(m), vr(t))


def phase1(slow):
    b = Block()
    b.dsr("ds_read_b128", XS[0], 4, vXADDR, 0)
    b.dsr("ds_read_b128", XS[0] + 4, 4, vXADDR, 1024)
    b.dsr("ds_read_b128", XS[0] + 8, 4, vXADDR, 2048)
    for t in range(3):
        s = t % 2
        if t + 1 < 3:
            for ks in range(3):
                b.dsr("ds_read_b128", XS[(t + 1) % 2] + 4 * ks, 4, vXADDR, ((t + 1) * 3 + ks) * 1024)
        if t == 0:
            b.dsr("ds_read_b128", QT + 12, 4, vE3A, 0)
            b.dsr("ds_read_b128", KT + 12, 4, vE3A, 64)
            b.dsr("ds_read_u16", VT + 6, 1, vPV, 256)
            b.dsr("ds_read_u16", VT + 14, 1, vPV, 264)
        vd = (0, 2, 4)[t]
        proj_tile(b, XS[s], ACC[s], NB[s], ND[s], QT + 4 * t, KT + 4 * t, VT + vd, VT + 8 + vd)
    s = SS[0]
    for kt in range(4):
        b.mfma(s + 4 * kt, QT + 12, KT + 4 * kt, CX + 6 + 2 * kt)
    if slow:
        m, t = s + 2, s + 3
        b.valu("v_max3_f32", vr(m), vr(s), vr(s + 4), vr(s + 8))
        b.valu("v_max_f32", vr(m), vr(m), vr(s + 12))
        for ror in (8, 4, 2, 1):
            b.valu("v_max_f32_dpp", vr(t), vr(m), vr(m), mod=f"row_ror:{ror} row_mask:0xf bank_mask:0xf")
            b.valu("v_mov_b32", vr(m), vr(t))
        for kt in range(4):
            b.valu("v_sub_f32", vr(s + 4 * kt), vr(s + 4 * kt), vr(m))
    for kt in range(4):
        b.valu("v_exp_f32", vr(s + 4 * kt), vr(s + 4 * kt))
    cvt(b, s + 1, s, s + 4)
    cvt(b, s + 5, s + 8, s + 12)
    b.dsw("ds_write_b16", vPV, s + 1, 1, 128, mem=["p48"])
    b.dsw("ds_write_b16_d16_hi", vPV, s + 1, 1, 136, mem=["p48"])
    b.dsw("ds_write_b16", vPV, s + 5, 1, 192, mem=["p48"])
    b.dsw("ds_write_b16_d16_hi", vPV, s + 5, 1, 200, mem=["p48"])
    p48 = PT + 8
    b.dsr("ds_read_b128", p48, 4, vE3A, 128, mem=["p48"])
    b.dsr("ds_read_b128", p48 + 4, 4, vE3A, 192, mem=["p48"])
    for qt in range(3):
        s = SS[(qt + 1) % 2]
        p = PT + 8 * (qt % 2)
        o = OO[qt % 2]
        for kt in range(3):
            b.mfma(s + 4 * kt, KT + 4 * kt, QT + 4 * qt, CB + (qt * 3 + kt) * 4)
        b.mfma(s + 12, KT + 12, QT + 4 * qt, CX + 2 * qt)
        if slow:
            m, t = s + 13, s + 14
            b.valu("v_max3_f32", vr(m), vr(s), vr(s + 1), vr(s + 2))
            for k in range(3, 13, 2):
                b.valu("v_max3_f32", vr(m), vr(m), vr(s + k), vr(s + k + 1))
            xmax(b, m, t, "v_permlane32_swap_b32")
            xmax(b, m, t, "v_permlane16_swap_b32")
            for k in range(13):
                b.valu("v_sub_f32", vr(s + k), vr(s + k), vr(m))
        for k in range(13):
            b.valu("v_exp_f32", vr(s + k), vr(s + k))
        for k in range(6):
            cvt(b, p + k, s + 2 * k, s + 2 * k + 1)
        cvt(b, p + 6, s + 12, "0")
        pv_and_out(b, p, o, qt * 3072, False)
        if qt == 0:
            pv_and_out(b, p48, OO[1], 3 * 3072, True)
    return b


def phase2():
    b = Block()
    OOP, Y, WST = T, T + 12, T + 36
    vOR, vWO = T + 76, T + 77
    vOF = PT
    b.dsr("ds_read_b128", OOP, 4, vOR, 0)
    b.dsr("ds_read_b128", OOP + 4, 4, vOR, 16)
    b.dsr("ds_read_b128", OOP + 8, 4, vOR, 32)
    b.dsr("ds_read_b32", vOF, 1, PT + 1, 0)
    k = 0
    for mt in range(6):
        for ks in range(3):
            w = WST + 4 * (k % 10)
            b.dsr("ds_read_b128", w, 4, vWO, WOF + (mt * 3 + ks) * 1024)
            b.mfma(Y + 4 * mt, w, OOP + 4 * ks, "0" if ks == 0 else Y + 4 * mt)
            k += 1
    a0, a1 = PT + 2, PT + 4
    for c, acc in enumerate((a0, a1)):
        for k in range(6):
            r = Y + 4 * k + 2 * c
            if k == 0:
                if c == 0:
                    b.valu("v_pk_fma_f32", vr(acc, 2), vr(r, 2), vr(r, 2), sr(sEPSL, 2))
                else:
                    b.valu("v_pk_mul_f32", vr(acc, 2), vr(r, 2), vr(r, 2))
            else:
                b.valu("v_pk_fma_f32", vr(acc, 2), vr(r, 2), vr(r, 2), vr(acc, 2))
    b.valu("v_pk_add_f32", vr(a0, 2), vr(a0, 2), vr(a1, 2))
    b.valu("v_add_f32", vr(a0), vr(a0), vr(a0 + 1))
    c96 = PT + 6
    b.valu("v_mov_b32", vr(c96), f32(1.0 / 96.0))
    D = PT + 8
    b.mfma(D, c96, a0, "0", shape="f32")
    b.valu("v_rsq_f32", vr(D), vr(D))
    for p in range(3):
        y = Y + 8 * p
        for k in range(4):
            pk_mul_lo(b, y + 2 * k, D)
        for k in range(4):
            cvt(b, y + k, y + 2 * k, y + 2 * k + 1)
        b.bstore(y, 4, vOF, sOUT, sr(sSOFF), 64 * p)
    return b


def lane_ngl(b, vl, vn, vg):
    b.valu("v_mbcnt_lo_u32_b32", vr(vl), "-1", "0")
    b.valu("v_mbcnt_hi_u32_b32", vr(vl), "-1", vr(vl))
    b.valu("v_and_b32", vr(vn), "15", vr(vl))
    b.valu("v_lshrrev_b32", vr(vg), "4", vr(vl))


QPAD = 0xBE8AC140
KPAD = 0x3F804140


def set_pads(b, vn, vg, tmp, sfx):
    ty, tx, r, cq, ck = tmp, tmp + 1, tmp + 2, tmp + 3, tmp + 4
    b.valu("v_mov_b32", vr(cq), "%#x" % QPAD)
    b.valu("v_mov_b32", vr(ck), "%#x" % KPAD)
    for t in range(3):
        b.valu("v_add_u32", vr(tx), str(16 * t), vr(vn))
        b.valu("v_mul_u32_u24", vr(ty), "37", vr(tx))
        b.valu("v_lshrrev_b32", vr(ty), "8", vr(ty))
        b.valu("v_mul_u32_u24", vr(r), "7", vr(ty))
        b.valu("v_sub_u32", vr(tx), vr(tx), vr(r))
        b.valu("v_lshrrev_b32", vr(ty), "2", vr(ty))
        b.valu("v_lshrrev_b32", vr(tx), "2", vr(tx))
        b.valu("v_mul_u32_u24", vr(r), sr(sFY2), vr(ty))
        b.valu("v_mad_u32_u24", vr(r), vr(tx), sfx, vr(r))
        b.vcmp("v_cmp_eq_u32", "vcc", vr(r), vr(vg))
        b.valu("v_cndmask_b32", vr(QT + 4 * t + 3), "0", vr(cq), "vcc")
        b.valu("v_cndmask_b32", vr(KT + 4 * t + 3), vr(ck), "0", "vcc", mod="")
    return


def srd(b, d, lo, nbytes):
    b.smov(sr(d), sr(lo))
    b.salu("s_and_b32", sr(d + 1), sr(lo + 1), "0xffff")
    b.smov(sr(d + 2), "%#x" % nbytes)
    b.smov(sr(d + 3), "0x00020000")


def setup():
    b = Block()
    vL, vN, vG, vL16 = T + 76, T + 77, PT, PT + 1
    t0 = 1
    b.scmp("s_cmp_ge_u32", "s2", str(NWG))
    b.branch("s_cbranch_scc1", "L_end")
    b.sload(sKA, 16, 0, 0)
    b.sload(sOUTP, 2, 0, 72)
    b.valu("v_lshrrev_b32", vr(t0), "6", "v0")
    b.valu("v_and_b32", vr(vL), "63", "v0")
    b.readfirstlane(sr(sH), vr(t0))
    b.valu("v_and_b32", vr(vN), "15", vr(vL))
    b.valu("v_lshrrev_b32", vr(vG), "4", vr(vL))
    b.valu("v_lshlrev_b32", vr(vL16), "4", vr(vL))
    b.salu("s_mul_i32", sr(sWY), "s2", "7282", scc=False)
    b.salu("s_lshr_b32", sr(sWY), sr(sWY), "16")
    b.salu("s_mul_i32", sr(sT), sr(sWY), "9", scc=False)
    b.salu("s_sub_u32", sr(sWX0), "s2", sr(sT))
    b.salu("s_mul_i32", sr(sWX0), sr(sWX0), "6", scc=False)
    b.scmp("s_cmp_eq_u32", sr(sWY), "53")
    b.salu("s_cselect_b32", sr(sFY2), "2", "0", scc=False, rscc=True)
    b.scmp("s_cmp_eq_u32", sr(sWX0), "48")
    b.salu("s_cselect_b32", sr(sFX5), "1", "0", scc=False, rscc=True)
    b.smov(sr(sEPSQ), f32(1e-12 / 8))
    b.smov(sr(sEPSQ + 1), f32(1e-12 / 8))
    b.smov(sr(sEPSL), f32(1e-5 * 96 / 8))
    b.smov(sr(sEPSL + 1), f32(1e-5 * 96 / 8))
    b.smov(sr(sM33), "0x33333333")
    b.smov(sr(sM33 + 1), "0x33333333")
    b.smov(sr(sM1), "0x00010001")
    b.smov(sr(sM1 + 1), "0x00010001")
    tok, ty, tx, row, cb_ = t0 + 1, t0 + 2, t0 + 3, t0 + 4, t0 + 5
    v3 = t0 + 6
    g16 = t0 + 7
    b.valu("v_lshlrev_b32", vr(g16), "4", vr(vG))
    b.salu("s_lshl_b32", sr(sT), sr(sH), "4")
    b.valu("v_add_u32", vr(tok), sr(sT), vr(vN))
    b.valu("v_mul_u32_u24", vr(ty), "37", vr(tok))
    b.valu("v_lshrrev_b32", vr(ty), "8", vr(ty))
    b.valu("v_mul_u32_u24", vr(tx), "7", vr(ty))
    b.valu("v_sub_u32", vr(tx), vr(tok), vr(tx))
    b.salu("s_mul_i32", sr(sT), sr(sWY), "7", scc=False)
    b.salu("s_add_u32", sr(sT), sr(sT), "3")
    b.valu("v_add_u32", vr(row), sr(sT), vr(ty))
    b.valu("v_subrev_u32", vr(ty), "378", vr(row))
    b.valu("v_min_u32", vr(row), vr(row), vr(ty))
    b.valu("v_mul_u32_u24", vr(row), "378", vr(row))
    b.valu("v_add_u32", vr(vDMAA), vr(row), vr(tx))
    b.valu("v_mul_u32_u24", vr(vDMAA), "192", vr(vDMAA))
    b.valu("v_add_u32", vr(vDMAA), vr(vDMAA), vr(g16))
    b.salu("s_mul_i32", sr(sT1), sr(sWX0), "7", scc=False)
    b.salu("s_add_u32", sr(sXOFF), sr(sT1), "38")
    b.valu("v_add_u32", vr(cb_), sr(sXOFF), vr(tx))
    b.valu("v_subrev_u32", vr(ty), "378", vr(cb_))
    b.valu("v_min_u32", vr(cb_), vr(cb_), vr(ty))
    b.valu("v_add_u32", vr(vDMAB), vr(row), vr(cb_))
    b.valu("v_mul_u32_u24", vr(vDMAB), "192", vr(vDMAB))
    b.valu("v_add_u32", vr(vDMAB), vr(vDMAB), vr(g16))
    b.salu("s_add_u32", sr(sT), sr(sT), "6")
    b.salu("s_sub_u32", sr(sSOFF), sr(sT), "378")
    b.salu("s_min_u32", sr(sT), sr(sT), sr(sSOFF))
    b.salu("s_mul_i32", sr(sT), sr(sT), "378", scc=False)
    b.salu("s_add_u32", sr(sSOFF), sr(sT1), "9")
    b.valu("v_mul_u32_u24", vr(cb_), "7", vr(vN))
    b.valu("v_add_u32", vr(cb_), sr(sSOFF), vr(cb_))
    b.valu("v_subrev_u32", vr(ty), "378", vr(cb_))
    b.valu("v_min_u32", vr(cb_), vr(cb_), vr(ty))
    b.valu("v_add_u32", vr(v3), sr(sT), vr(cb_))
    b.valu("v_mul_u32_u24", vr(v3), "192", vr(v3))
    b.valu("v_add_u32", vr(v3), vr(v3), vr(g16))
    b.valu("v_mov_b32", vr(ty), "0x40000000")
    b.vcmp("v_cmp_gt_u32", "vcc", "6", vr(vN))
    b.valu("v_cndmask_b32", vr(v3), vr(ty), vr(v3), "vcc")
    b.salu("s_add_u32", sr(sXOFF), sr(sT1), "3")
    b.salu("s_mul_i32", sr(sXOFF), sr(sXOFF), "192", scc=False)
    vWR = t0 + 8
    jp, gp, s_, hh, w_, d1, d2 = t0 + 10, t0 + 11, t0 + 12, t0 + 13, t0 + 14, t0 + 15, t0 + 16
    b.valu("v_and_b32", vr(jp), "3", vr(vN))
    b.valu("v_lshrrev_b32", vr(gp), "2", vr(vN))
    b.salu("s_lshl_b32", sr(sT), sr(sH), "3")
    for half in range(2):
        b.valu("v_add_u32", vr(s_), sr(sT), vr(jp))
        if half:
            b.valu("v_add_u32", vr(s_), "4", vr(s_))
        b.valu("v_mul_u32_u24", vr(hh), "43", vr(s_))
        b.valu("v_lshrrev_b32", vr(hh), "8", vr(hh))
        b.valu("v_mul_u32_u24", vr(w_), "6", vr(hh))
        b.valu("v_sub_u32", vr(w_), vr(s_), vr(w_))
        b.valu("v_and_b32", vr(d1), "1", vr(hh))
        b.valu("v_lshl_add_u32", vr(w_), vr(d1), "2", vr(w_))
        b.valu("v_subrev_u32", vr(d1), "6", vr(w_))
        b.valu("v_min_u32", vr(w_), vr(w_), vr(d1))
        b.valu("v_lshl_add_u32", vr(d1), vr(gp), "2", vr(w_))
        b.valu("v_lshl_add_u32", vr(d2), vr(gp), "1", vr(w_))
        b.valu("v_add_u32", vr(d2), "12", vr(d2))
        b.vcmp("v_cmp_gt_u32", "vcc", "4", vr(w_))
        b.valu("v_cndmask_b32", vr(d1), vr(d2), vr(d1), "vcc")
        b.valu("v_mad_u32_u24", vr(d1), vr(hh), "24", vr(d1))
        b.valu("v_mul_u32_u24", vr(d1), "192", vr(d1))
        b.valu("v_add_u32", vr(vWR + half), vr(d1), vr(g16))
    vRI, vRI2, vRI3, vRI4, vRC = t0 + 17, t0 + 18, t0 + 19, t0 + 20, t0 + 21
    b.valu("v_mul_u32_u24", vr(vRI2), "196", vr(vN))
    b.valu("v_add_u32", vr(vRI), vr(vRI2), vr(g16))
    b.valu("v_lshlrev_b32", vr(vRI3), "2", vr(vN))
    b.valu("v_add_u32", vr(vRI3), "9408", vr(vRI3))
    b.valu("v_mov_b32", vr(vRI4), "9600")
    b.valu("v_lshlrev_b32", vr(vRC), "2", "v0")
    b.wait("lgkmcnt(0)")
    srd(b, sX, sKA + 0, XBYTES)
    srd(b, sOUT, sOUTP, XBYTES)
    srd(b, sW, sKA + 2, 55296)
    srd(b, sWO, sKA + 4, 18432)
    srd(b, sRC, sKA + 12, 676)
    srd(b, sRI, sKA + 14, 9604)
    b.sload(sLS, 2, sKA + 6, 0)
    b.sload(sW1, 16, sKA + 8, 0)
    b.smov(sr(sOUTP), sr(sKA + 10))
    b.smov(sr(sOUTP + 1), sr(sKA + 11))
    b.sload(sW2A, 16, sOUTP, 0)
    b.sload(sKA, 16, sOUTP, 64)
    RCV = t0 + 22
    WOR = 24
    b.bload(RCV, 1, vRC, sRC)
    for half in range(2):
        for p in range(3):
            b.bload(WOR + (half * 3 + p) * 4, 4, vWR + half, sWO, "0", 64 * p)
    b.salu("s_lshl_b32", sr(sT), sr(sH), "10")
    for k in range(13):
        b.smov("m0", sr(sT))
        b.dma(vL16, sW, sr(sT))
        b.salu("s_add_u32", sr(sT), sr(sT), "4096")
    b.scmp("s_cmp_ge_u32", sr(sH), "2")
    b.branch("s_cbranch_scc1", "L_skipw")
    b.smov("m0", sr(sT))
    b.dma(vL16, sW, sr(sT))
    b.label("L_skipw")
    for ks in range(3):
        b.bload(XS[0] + 4 * ks, 4, v3, sX, "0", 64 * ks)
    b.scmp("s_cmp_eq_u32", sr(sH), "3")
    b.branch("s_cbranch_scc1", "L_skipx0")
    b.salu("s_mul_i32", sr(sT), sr(sH), "3072", scc=False)
    b.salu("s_add_u32", sr(sT), sr(sT), str(XB0))
    b.smov(sr(sT1), sr(sXOFF))
    for ks in range(3):
        b.smov("m0", sr(sT))
        b.dma(vDMAA, sX, sr(sT1))
        if ks < 2:
            b.salu("s_add_u32", sr(sT), sr(sT), "1024")
            b.salu("s_add_u32", sr(sT1), sr(sT1), "64")
    b.label("L_skipx0")
    b.smov(sr(sT), "3136")
    b.smov(sr(sT1), "6272")
    so = ["0", sr(sT), sr(sT1)]
    for qt in range(3):
        for kt in range(3):
            b.bload(CB + (qt * 3 + kt) * 4, 4, vRI, sRI, so[qt], 64 * kt)
    for qt in range(3):
        b.bload(CX + 2 * qt, 1, vRI2, sRI, so[qt], 192)
    for kt in range(3):
        b.bload(CX + 6 + 2 * kt, 1, vRI3, sRI, "0", 64 * kt)
    b.bload(CX + 12, 1, vRI4, sRI)
    va = t0 + 1
    b.valu("v_lshlrev_b32", vr(va), "2", vr(vL))
    b.salu("s_lshl_b32", sr(sT), sr(sH), "8")
    b.salu("s_add_u32", sr(sT), sr(sT), str(OFFS))
    b.valu("v_add_u32", vr(va), sr(sT), vr(va))
    b.dsw("ds_write_b32", va, vDMAB, 1, 1024)
    b.scmp("s_cmp_eq_u32", sr(sH), "3")
    b.branch("s_cbranch_scc1", "L_w3a")
    b.dsw("ds_write_b32", va, vDMAA, 1, 0)
    b.branch("s_branch", "L_w3b")
    b.label("L_w3a")
    b.dsw("ds_write_b32", va, v3, 1, 0)
    z = 4
    for k in range(4):
        b.valu("v_mov_b32", vr(z + k), "0")
    b.valu("v_add_u32", vr(va), str(DUM), vr(vL16))
    b.dsw("ds_write_b128", va, z, 4, 0)
    b.dsw("ds_write_b128", va, z, 4, 1920 - 1024)
    b.label("L_w3b")
    b.salu("s_mul_i32", sr(sT), sr(sH), str(E3W), scc=False)
    b.salu("s_add_u32", sr(sT), sr(sT), str(E3))
    b.valu("v_add_u32", vr(vE3A), sr(sT), vr(g16))
    pat = t0 + 1
    b.valu("v_lshlrev_b32", vr(pat), "4", vr(gp))
    b.valu("v_lshl_add_u32", vr(pat), vr(jp), "1", vr(pat))
    b.valu("v_mov_b32", vr(t0 + 2), str(DUM))
    b.valu("v_mov_b32", vr(t0 + 3), sr(sT))
    b.vcmp("v_cmp_eq_u32", "vcc", "0", vr(vG))
    b.valu("v_cndmask_b32", vr(vPV), vr(t0 + 2), vr(t0 + 3), "vcc")
    b.valu("v_add_u32", vr(vPV), vr(vPV), vr(pat))
    vV3W, vQ3W = PT + 2, PT + 3
    b.valu("v_mul_u32_u24", vr(vV3W), str(4 * EST), vr(vG))
    b.valu("v_add3_u32", vr(vV3W), vr(vV3W), vr(pat), sr(sT))
    b.valu("v_mul_u32_u24", vr(vQ3W), str(EST), vr(vN))
    b.valu("v_add_u32", vr(vQ3W), vr(vQ3W), vr(vE3A))
    b.valu("v_add_u32", vr(vXADDR), str(XB0), vr(vL16))
    b.valu("v_mul_u32_u24", vr(vOW64), "48", vr(vL))
    b.salu("s_mul_i32", sr(sT), sr(sH), "12", scc=False)
    b.salu("s_and_b32", sr(sT1), sr(sH), "1")
    b.salu("s_lshl_b32", sr(sT1), sr(sT1), "2")
    b.salu("s_add_u32", sr(sSOFF), sr(sT), sr(sT1))
    b.salu("s_lshl_b32", sr(sT1), sr(sT1), "1")
    b.salu("s_add_u32", sr(sT), sr(sT), "8")
    b.salu("s_sub_u32", sr(sT), sr(sT), sr(sT1))
    b.salu("s_add_u32", sr(sT), sr(sT), str(OB0))
    b.valu("v_add_u32", vr(vOW32), sr(sT), vr(vOW64))
    b.salu("s_add_u32", sr(sT), sr(sSOFF), str(OB0))
    b.valu("v_add_u32", vr(vOW64), sr(sT), vr(vOW64))
    one2 = t0 + 2
    b.valu("v_mov_b32", vr(one2), "0x3f803f80")
    b.vcmp("v_cmp_eq_u32", "vcc", "0", vr(jp))
    b.valu("v_cndmask_b32", vr(SEL), "0", vr(one2), "vcc")
    b.vcmp("v_cmp_eq_u32", "vcc", "2", vr(jp))
    b.valu("v_cndmask_b32", vr(SEL + 1), "0", vr(one2), "vcc")
    b.valu("v_cndmask_b32", vr(VT + 8), "0", vr(one2), "vcc")
    for k in (9, 10, 11, 12, 13):
        b.valu("v_mov_b32", vr(VT + k), vr(VT + 8))
    for r in (VT + 7, VT + 15, PT + 7, PT + 15):
        b.valu("v_mov_b32", vr(r), "0")
    set_pads(b, vN, vG, t0 + 3, "0")
    r_ = t0 + 3
    b.vcmp("v_cmp_eq_u32", "vcc", "5", vr(vN))
    b.valu("v_mov_b32", vr(r_ + 1), sr(sFX5))
    b.valu("v_cndmask_b32", vr(r_), "0", vr(r_ + 1), "vcc")
    b.valu("v_add_u32", vr(r_), sr(sFY2), vr(r_))
    b.vcmp("v_cmp_eq_u32", "vcc", vr(r_), vr(vG))
    b.valu("v_cndmask_b32", vr(QT + 15), "0", vr(t0 + 6), "vcc")
    b.valu("v_cndmask_b32", vr(KT + 15), vr(t0 + 7), "0", "vcc")
    F = 48
    ONES = 54
    hv = t0 + 3
    b.valu("v_and_b32", vr(hv), "1", vr(vN))
    b.valu("v_lshlrev_b32", vr(hv), "4", vr(hv))
    b.valu("v_mov_b32", vr(hv + 1), "0x3f80")
    b.valu("v_lshlrev_b32", vr(hv), vr(hv), vr(hv + 1))
    HV = PT + 4
    b.valu("v_mov_b32", vr(HV), vr(hv))
    b.valu("v_lshrrev_b32", vr(hv + 1), "1", vr(vN))
    b.valu("v_lshlrev_b32", vr(hv + 2), "1", vr(vG))
    b.vcmp("v_cmp_eq_u32", "vcc", vr(hv + 1), vr(hv + 2))
    b.valu("v_cndmask_b32", vr(F + 2), "0", vr(hv), "vcc")
    b.valu("v_add_u32", vr(hv + 2), "1", vr(hv + 2))
    b.vcmp("v_cmp_eq_u32", "vcc", vr(hv + 1), vr(hv + 2))
    b.valu("v_cndmask_b32", vr(F + 3), "0", vr(hv), "vcc")
    for r in (F, F + 1, F + 4, F + 5):
        b.valu("v_mov_b32", vr(r), "0")
    for k in range(4):
        b.valu("v_mov_b32", vr(ONES + k), vr(one2))
    b.wait("lgkmcnt(0)")
    b.salu("s_lshl_b32", sr(sT), sr(sH), "4")
    b.salu("s_lshr_b64", sr(sLS, 2), sr(sLS, 2), sr(sT))
    b.salu("s_lshl_b32", sr(sT), sr(sLS), "16")
    tv = t0 + 3
    b.valu("v_mov_b32", vr(tv), sr(sT))
    b.valu("v_min_f32", vr(tv), f32(4.59375), vr(tv))
    b.valu("v_max_f32", vr(tv), f32(-100.0), vr(tv))
    b.valu("v_mul_f32", vr(tv), f32(LOG2E), vr(tv))
    b.valu("v_exp_f32", vr(tv), vr(tv))
    cvt(b, tv, tv, tv)
    b.valu("v_lshlrev_b32", vr(tv), "16", vr(tv))
    b.readfirstlane(sr(sSLOW), vr(tv))
    b.valu("v_mul_f32", vr(tv), f32(LOG2E), vr(tv))
    b.readfirstlane(sr(sTAU), vr(tv))
    b.scmp("s_cmp_gt_u32", sr(sSLOW), f32(19.5))
    b.salu("s_cselect_b32", sr(sSLOW), "1", "0", scc=False, rscc=True)
    b.scmp("s_cmp_eq_u32", sr(sH), "3")
    b.branch("s_cbranch_scc1", "L_skiptab")
    b.wait("vmcnt(35)")
    rx, ry = t0 + 3, t0 + 4
    HID = ACC[0]
    OUT4 = ACC[0] + 16
    b.valu("v_lshlrev_b32", vr(rx), "16", vr(RCV))
    b.valu("v_and_b32", vr(ry), "0xffff0000", vr(RCV))
    for u in range(16):
        a_, c_ = sW1 + u // 2, sW1 + 8 + u // 2
        if u % 2 == 0:
            b.salu("s_lshl_b32", sr(sT), sr(a_), "16")
            b.salu("s_lshl_b32", sr(sT1), sr(c_), "16")
        else:
            b.salu("s_and_b32", sr(sT), sr(a_), "0xffff0000")
            b.salu("s_and_b32", sr(sT1), sr(c_), "0xffff0000")
        b.valu("v_mul_f32", vr(HID + u), sr(sT), vr(rx))
        b.valu("v_fma_f32", vr(HID + u), vr(ry), sr(sT1), vr(HID + u))
    for u in range(0, 16, 2):
        cvt(b, HID + u, HID + u, HID + u + 1)
        b.valu("v_pk_max_i16", vr(HID + u), vr(HID + u), "0")
        b.valu("v_and_b32", vr(HID + u + 1), "0xffff0000", vr(HID + u))
        b.valu("v_lshlrev_b32", vr(HID + u), "16", vr(HID + u))
    for u in range(16):
        base = (sW2A + 2 * u) if u < 8 else (sKA + 2 * (u - 8))
        for hh_ in range(4):
            s_src = base + hh_ // 2
            st = sT if hh_ % 2 == 0 else sT1
            if hh_ % 2 == 0:
                b.salu("s_lshl_b32", sr(st), sr(s_src), "16")
            else:
                b.salu("s_and_b32", sr(st), sr(s_src), "0xffff0000")
            if u == 0:
                b.valu("v_mul_f32", vr(OUT4 + hh_), sr(st), vr(HID + u))
            else:
                b.valu("v_fma_f32", vr(OUT4 + hh_), vr(HID + u), sr(st), vr(OUT4 + hh_))
    for hh_ in range(4):
        o = OUT4 + hh_
        cvt(b, o, o, o)
        b.valu("v_lshlrev_b32", vr(o), "16", vr(o))
        b.valu("v_mul_f32", vr(o), f32(-LOG2E), vr(o))
        b.valu("v_exp_f32", vr(o), vr(o))
        b.valu("v_add_f32", vr(o), "1.0", vr(o))
        b.valu("v_rcp_f32", vr(o), vr(o))
        cvt(b, o, o, o)
        b.valu("v_lshlrev_b32", vr(o), "16", vr(o))
        b.valu("v_mov_b32", vr(rx), f32(-8.0 * LOG2E))
        b.valu("v_fmac_f32", vr(rx), f32(16.0 * LOG2E), vr(o), rmw=True)
        b.valu("v_mov_b32", vr(o), vr(rx))
    b.valu("v_lshlrev_b32", vr(rx), "4", "v0")
    b.dsw("ds_write_b128", rx, OUT4, 4, TAB)
    WRES = T + 44
    DS_, DM = ACC[0], ACC[0] + 4
    for half in range(2):
        rows = WOR + half * 12
        for p in range(3):
            b.mfma(DS_, rows + 4 * p, ONES, "0" if p == 0 else DS_)
        for k in range(4):
            b.valu("v_mul_f32", vr(DS_ + k), f32(-1.0 / 96.0), vr(DS_ + k))
        for mt in range(6):
            d = DM + 4 * (mt % 3)
            b.mfma(d, rows + 4 * (mt // 2), F + (2 if mt % 2 == 0 else 0), DS_)
            if mt % 3 == 2:
                for m2 in range(mt - 2, mt + 1):
                    d2_ = DM + 4 * (m2 % 3)
                    cvt(b, WRES + 4 * m2 + 2 * half, d2_, d2_ + 1)
                    cvt(b, WRES + 4 * m2 + 2 * half + 1, d2_ + 2, d2_ + 3)
    b.label("L_skiptab")
    E2, E3m = VT, PT + 8
    k1 = t0 + 3
    b.valu("v_lshrrev_b32", vr(k1), "1", vr(jp))
    b.vcmp("v_cmp_eq_u32", "vcc", vr(k1), vr(vG))
    b.valu("v_cndmask_b32", vr(k1 + 1), "0", vr(HV), "vcc")
    b.valu("v_add_u32", vr(k1), "2", vr(k1))
    b.vcmp("v_cmp_eq_u32", "vcc", vr(k1), vr(vG))
    b.valu("v_cndmask_b32", vr(k1 + 2), "0", vr(HV), "vcc")
    b.vcmp("v_cmp_gt_u32", "vcc", "3", vr(vG))
    b.valu("v_cndmask_b32", vr(k1 + 2), "0", vr(k1 + 2), "vcc")
    for r in range(4):
        b.vcmp("v_cmp_eq_u32", "vcc", str(r), vr(gp))
        b.valu("v_cndmask_b32", vr(E2 + r), "0", vr(k1 + 1), "vcc")
        b.valu("v_cndmask_b32", vr(E3m + r), "0", vr(k1 + 2), "vcc")
    vTR, vAP = PT + 5, PT + 6
    b.salu("s_mul_i32", sr(sT), sr(sH), "48", scc=False)
    b.valu("v_lshl_add_u32", vr(vTR), vr(vG), "3", vr(gp))
    b.valu("v_mul_u32_u24", vr(vTR), "576", vr(vTR))
    b.valu("v_lshl_add_u32", vr(vTR), vr(jp), "3", vr(vTR))
    b.valu("v_add_u32", vr(vTR), sr(sT), vr(vTR))
    b.valu("v_lshl_add_u32", vr(vAP), vr(gp), "3", vr(jp))
    b.valu("v_mul_u32_u24", vr(vAP), "576", vr(vAP))
    b.valu("v_min_u32", vr(k1), "2", vr(vG))
    b.valu("v_mul_u32_u24", vr(k1), "192", vr(k1))
    b.salu("s_add_u32", sr(sT), sr(sT), "32")
    b.valu("v_add3_u32", vr(vAP), vr(vAP), vr(k1), sr(sT))
    b.wait("vmcnt(0) lgkmcnt(0)")
    b.fence()
    b.raw("s_barrier", "barrier")
    c = Block()
    for ks in range(3):
        for hf in range(2):
            ro = (32 * ks + 4 * hf) * 576
            c.dsr("ds_read_b64_tr_b16", wa(0, ks) + 2 * hf, 2, vTR, ro)
            c.dsr("ds_read_b64_tr_b16", wa(1, ks) + 2 * hf, 2, vTR, ro + 192)
            c.dsr("ds_read_b64_tr_b16", wv(0, ks) + 2 * hf, 2, vTR, ro + 384)
            ap = XS[1] + 4 * ((ks * 2 + hf) % 3)
            c.dsr("ds_read_b128", ap, 4, vAP, ro)
            d = ACC[0] + 8 * ((ks * 2 + hf) % 2)
            c.mfma(d, ap, E2, "0")
            c.mfma(d + 4, ap, E3m, "0")
            cvt(c, wa(2, ks) + 2 * hf, d, d + 1)
            cvt(c, wa(2, ks) + 2 * hf + 1, d + 2, d + 3)
            cvt(c, wv(1, ks) + 2 * hf, d + 4, d + 5)
            cvt(c, wv(1, ks) + 2 * hf + 1, d + 6, d + 7)
    c.salu("s_lshl_b32", sr(sT), sr(sH), "2")
    c.salu("s_add_u32", sr(sT), sr(sT), str(TAB))
    for r in list(range(CB, CB + 36)) + [CX + 2 * k for k in range(7)]:
        c.valu("v_lshl_add_u32", vr(r), vr(r), "4", sr(sT))
        c.dsr("ds_read_b32", r, 1, r, 0)
    proj_tile(c, XS[0], ACC[0], XS[1], ND[0], QT + 12, KT + 12, None, None)
    a = ACC[0]
    sch, _ = schedule(c.ins)
    b.ins.extend(sch)
    b.smov(sr(sT2), "0x003f003f")
    b.smov(sr(sT3), "0x003f003f")
    b.smov("exec", sr(sT2, 2))
    b.dsw("ds_write_b128", vQ3W, QT + 12, 4, 0)
    b.dsw("ds_write_b128", vQ3W, KT + 12, 4, 64)
    b.smov("exec", "-1")
    cvt(b, a + 12, a + 12, a + 13)
    cvt(b, a + 13, a + 14, a + 15)
    cvt(b, a + 16, a + 16, a + 17)
    cvt(b, a + 17, a + 18, a + 19)
    b.valu("v_or_b32", vr(a + 16), vr(a + 16), vr(VT + 8))
    b.valu("v_or_b32", vr(a + 17), vr(a + 17), vr(VT + 8))
    b.smov(sr(sT2), "-1")
    b.smov(sr(sT3), "0")
    b.smov("exec", sr(sT2, 2))
    for nt in range(2):
        b.dsw("ds_write_b16", vV3W, a + 12 + 4 * nt, 1, 256 + 8 * nt)
        b.dsw("ds_write_b16_d16_hi", vV3W, a + 12 + 4 * nt, 1, EST + 256 + 8 * nt)
    b.smov(sr(sT2), "0xffff")
    b.smov("exec", sr(sT2, 2))
    for nt in range(2):
        b.dsw("ds_write_b16", vV3W, a + 13 + 4 * nt, 1, 2 * EST + 256 + 8 * nt)
        b.dsw("ds_write_b16_d16_hi", vV3W, a + 13 + 4 * nt, 1, 3 * EST + 256 + 8 * nt)
    b.smov("exec", "-1")
    b.smov(sr(sO64), sr(sSOFF))
    b.smov(sr(sI), "0")
    b.smov(sr(sDOB), str(OB1 - OB0))
    b.smov(sr(sDXB), str((XB1 - XB0) & 0xffffffff))
    b.smov(sr(sXB), str(XB0))
    b.smov(sr(sSOFF), sr(sXOFF))
    b.salu("s_sub_u32", sr(sSOFF), sr(sSOFF), "1344")
    b.valu("v_mov_b32", vr(PT + 15), "0")
    b.fence()
    if DEBUG:
        b.sload(56, 2, 0, 88)
        b.wait("lgkmcnt(0)")
        b.smov(sr(58), "0x10000000")
        b.smov(sr(59), "0x00020000")
        b.salu("s_lshl_b32", sr(sT), "s2", "2")
        b.salu("s_add_u32", sr(sT), sr(sT), sr(sH))
        b.salu("s_lshl_b32", sr(sT), sr(sT), "13")
        b.valu("v_lshlrev_b32", vr(T + 76), "3", vr(vL16))
        for k, r in enumerate((QT + 12, KT + 12, a + 12, a + 16, CX, CX + 4, CX + 8, XS[0])):
            b.bstore(r, 4, T + 76, 56, sr(sT), 16 * k)
        b.wait("vmcnt(0)")
    b.raw("s_barrier", "barrier")
    b.scmp("s_cmp_eq_u32", sr(sH), "3")
    b.branch("s_cbranch_scc1", "L_loop")
    b.salu("s_lshl_b32", sr(sT), sr(sH), "10")
    b.valu("v_add_u32", vr(vL16), sr(sT), vr(vL16))
    for mt in range(6):
        b.dsw("ds_write_b128", vL16, WRES + 4 * mt, 4, WOF + mt * 3072)
    return b


def main_loop():
    b = Block()
    b.label("L_loop")
    b.scmp("s_cmp_ge_u32", sr(sI), "5")
    b.branch("s_cbranch_scc1", "L_nodma")
    b.salu("s_add_u32", sr(sXOFF), sr(sXOFF), "1344")
    b.scmp("s_cmp_lg_u32", sr(sI), "4")
    b.branch("s_cbranch_scc1", "L_nob")
    b.valu("v_mov_b32", vr(vDMAA), vr(vDMAB))
    b.smov(sr(sXOFF), "0")
    b.label("L_nob")
    b.scmp("s_cmp_eq_u32", sr(sH), "3")
    b.branch("s_cbranch_scc1", "L_nodma")
    b.salu("s_mul_i32", sr(sT), sr(sH), "3072", scc=False)
    b.salu("s_add_u32", sr(sT), sr(sT), sr(sXB))
    b.salu("s_add_u32", sr(sT), sr(sT), sr(sDXB))
    b.smov(sr(sT1), sr(sXOFF))
    for ks in range(3):
        b.smov("m0", sr(sT))
        b.dma(vDMAA, sX, sr(sT1))
        if ks < 2:
            b.salu("s_add_u32", sr(sT), sr(sT), "1024")
            b.salu("s_add_u32", sr(sT1), sr(sT1), "64")
    b.label("L_nodma")
    b.smov(sr(sT3), "0")
    b.scmp("s_cmp_eq_u32", sr(sI), "0")
    b.branch("s_cbranch_scc1", "L_nop2")
    b.salu("s_add_u32", sr(sTILE), sr(sH), sr(sI))
    b.salu("s_add_u32", sr(sTILE), sr(sTILE), "3")
    b.salu("s_and_b32", sr(sTILE), sr(sTILE), "3")
    vOR, vWO = T + 76, T + 77
    b.salu("s_sub_u32", sr(sT), "0", sr(sXB))
    b.valu("v_add_u32", vr(vWO), sr(sT), vr(vXADDR))
    b.salu("s_mul_i32", sr(sT), sr(sTILE), "3072", scc=False)
    b.salu("s_add_u32", sr(sT), sr(sT), sr(sDOB))
    b.salu("s_sub_u32", sr(sT), sr(sT), sr(sO64))
    b.valu("v_add_u32", vr(vOR), sr(sT), vr(vOW64))
    b.salu("s_lshl_b32", sr(sT1), sr(sTILE), "8")
    b.scmp("s_cmp_lt_u32", sr(sI), "6")
    b.branch("s_cbranch_scc1", "L_p2mid")
    b.smov(sr(sSOFF), "0")
    b.scmp("s_cmp_eq_u32", sr(sTILE), "3")
    b.branch("s_cbranch_scc1", "L_p2x")
    b.salu("s_add_u32", sr(sT1), sr(sT1), "1024")
    b.branch("s_branch", "L_p2go")
    b.label("L_p2x")
    b.valu("v_lshrrev_b32", vr(PT), "4", vr(vWO))
    b.valu("v_mul_u32_u24", vr(vOR), "48", vr(PT))
    b.valu("v_and_b32", vr(PT), "1", vr(PT))
    b.valu("v_mul_u32_u24", vr(PT), str(OB1 - OB0), vr(PT))
    b.valu("v_add_u32", vr(vOR), vr(vOR), vr(PT))
    b.valu("v_add_u32", vr(vOR), str(OB0 + 3 * 3072), vr(vOR))
    b.branch("s_branch", "L_p2go")
    b.label("L_p2mid")
    b.scmp("s_cmp_eq_u32", sr(sTILE), "3")
    b.branch("s_cbranch_scc1", "L_nop2")
    b.label("L_p2go")
    b.salu("s_add_u32", sr(sT1), sr(sT1), str(OFFS))
    b.valu("v_lshrrev_b32", vr(PT + 1), "2", vr(vWO))
    b.valu("v_add_u32", vr(PT + 1), sr(sT1), vr(PT + 1))
    b.smov(sr(sT3), "1")
    sch, t2 = schedule(phase2().ins)
    b.ins.extend(sch)
    b.scmp("s_cmp_eq_u32", sr(sI), "6")
    b.branch("s_cbranch_scc1", "L_end")
    b.label("L_nop2")
    b.salu("s_lshl_b64", sr(sEX, 2), sr(sM1, 2), sr(sI))
    b.scmp("s_cmp_eq_u32", sr(sI), "5")
    b.branch("s_cbranch_scc1", "L_pads5")
    b.label("L_p1")
    b.scmp("s_cmp_lg_u32", sr(sSLOW), "0")
    b.branch("s_cbranch_scc1", "L_p1slow")
    sch, t1 = schedule(phase1(False).ins)
    b.ins.extend(sch)
    b.label("L_p1done")
    b.valu("v_add_u32", vr(vXADDR), sr(sDXB), vr(vXADDR))
    b.valu("v_add_u32", vr(vOW64), sr(sDOB), vr(vOW64))
    b.valu("v_add_u32", vr(vOW32), sr(sDOB), vr(vOW32))
    b.valu("v_add_u32", vr(vE3A), str(EST), vr(vE3A))
    b.valu("v_add_u32", vr(vPV), str(EST), vr(vPV))
    b.salu("s_add_u32", sr(sXB), sr(sXB), sr(sDXB))
    b.salu("s_sub_u32", sr(sDXB), "0", sr(sDXB))
    b.salu("s_sub_u32", sr(sDOB), "0", sr(sDOB))
    b.salu("s_add_u32", sr(sSOFF), sr(sSOFF), "1344")
    b.salu("s_add_u32", sr(sI), sr(sI), "1")
    b.scmp("s_cmp_eq_u32", sr(sT3), "0")
    b.branch("s_cbranch_scc1", "L_w0")
    b.wait("vmcnt(3)")
    b.raw("s_barrier", "barrier")
    b.branch("s_branch", "L_loop")
    b.label("L_w0")
    b.wait("vmcnt(0)")
    b.raw("s_barrier", "barrier")
    b.branch("s_branch", "L_loop")
    b.label("L_end")
    b.raw("s_endpgm", "end")
    b.label("L_pads5")
    b.scmp("s_cmp_eq_u32", sr(sFX5), "0")
    b.branch("s_cbranch_scc1", "L_p1")
    lane_ngl(b, T, T + 1, T + 2)
    set_pads(b, T + 1, T + 2, T + 3, sr(sFX5))
    b.branch("s_branch", "L_p1")
    b.label("L_p1slow")
    sch, t1s = schedule(phase1(True).ins)
    b.ins.extend(sch)
    b.branch("s_branch", "L_p1done")
    print(f"; est cycles: phase1 {t1} slow {t1s} phase2 {t2}", file=sys.stderr)
    return b


HEADER = open("standalone__window_attn_swin_v2__vision.s.ref").read().split("; Override launch")[0]


def build():
    b = setup()
    b.extend(main_loop())
    ins, nops = finalize(b.ins)
    print(f"; instructions {sum(1 for i in ins if i.kind not in ('label','comment','fence'))} nop-states {nops}", file=sys.stderr)
    body = render(ins)
    txt = HEADER + f"""; Generated by work/gen.py (hand-written generator): one workgroup = 4 waves = 4 heads, 6 windows each.
; @launch grid=({NWG},1,1) block=(256,1,1) lds={LDS_BYTES}
.amdgcn_target "amdgcn-amd-amdhsa--gfx950"
.text
.globl {KNAME}
.p2align 8
.type {KNAME},@function
{KNAME}:
{body}
.section .rodata,"a"
.p2align 6
.amdhsa_kernel {KNAME}
  .amdhsa_next_free_vgpr {NVGPR}
  .amdhsa_next_free_sgpr 102
  .amdhsa_accum_offset {NVGPR}
  .amdhsa_group_segment_fixed_size 0
  .amdhsa_kernarg_size 96
  .amdhsa_user_sgpr_count 2
  .amdhsa_user_sgpr_kernarg_segment_ptr 1
  .amdhsa_system_sgpr_workgroup_id_x 1
.end_amdhsa_kernel
"""
    return txt


if __name__ == "__main__":
    out = sys.argv[1] if len(sys.argv) > 1 else "standalone__window_attn_swin_v2__vision.s"
    open(out, "w").write(build())
```

```python
import os
import struct
import sys
from asmdsl import *

KNAME = "standalone__window_attn_swin_v2__vision_kernel"
NWG = 243
XBYTES = 378 * 378 * 96 * 2
LOG2E = 1.4426950408889634
STAMPS = bool(os.environ.get("STAMPS"))
PRIO = int(os.environ.get("PRIO", "1"))


def f32(x):
    return "0x%08x" % struct.unpack("<I", struct.pack("<f", x))[0]


RAW = 0
OB0 = 0
OBD = 12288
OBG = 24576
TAB = 55296
TABH = 704
WOF = 58368
XB0 = 76800
XBD = 9216
XBG = 18432
E3 = 113664
E3W = 1920
EST = 320
DUM = 129024
OFFS = 130944
SYNC = 135040
LDS_BYTES = 135104
DBGL = 135104

sDB = 3
sX, sOUT, sW = 4, 8, 12
sH, sWY, sWX0, sI = 16, 17, 18, 19
sXOFF, sSOFF, sT, sT1 = 20, 21, 22, 23
sEPSQ, sEPSL = 24, 25
sM33, sM1 = 26, 28
sSLOW, sTAU, sDOB, sDXB = 30, 31, 32, 33
sFY2, sFX5 = 34, 35
sXB, sO64, sT2, sT3, sTILE, sPAR = 36, 37, 38, 39, 40, 41
sEX = 42
sWV, sGR, sOFFS, sOBG = 74, 75, 76, 77
sCNT = 78
sMK = 44
sKA = 52
sOUTP = 68
sLS = 70
sSTAMP = 72
NSGPR = 96 if STAMPS else 80

WA = 0
WV = 36
CB = 60
CX = 96
vXADDR, vOW64, vOW32, vE3A, vPV, vSYNC = CX + 1, CX + 3, CX + 5, CX + 7, CX + 9, CX + 11
SEL = 112
QT = 114
KT = 130
VT = 146
PT = 162
T = 178
NVGPR = 256
XS = [T, T + 12]
ACC = [T + 24, T + 44]
NB = [T + 64, T + 66]
ND = [T + 68, T + 72]
SS = [T, T + 44]
OO = [T + 16, T + 60]

QPAD = 0xBE8AC140
KPAD = 0x3F804140


def wa(mt, ks):
    return WA + (mt * 3 + ks) * 4


def wv(nt, ks):
    return WV + (nt * 3 + ks) * 4


def lmask(f):
    return sum(1 << l for l in range(64) if f(l & 15, l >> 4))


def set_exec(b, m):
    lo, hi = m & 0xffffffff, m >> 32
    b.add(I(f"s_mov_b32 exec_lo, {lo:#x}", "salu", [], ["exec"]))
    b.add(I(f"s_mov_b32 exec_hi, {hi:#x}", "salu", [], ["exec"]))


def mul2(b, d, sc):
    b.valu("v_mul_f32", vr(d), vr(sc), vr(d))
    b.valu("v_mul_f32", vr(d + 1), vr(sc), vr(d + 1))


def cvt(b, d, lo, hi):
    b.valu("v_cvt_pk_bf16_f32", vr(d), lo if isinstance(lo, str) else vr(lo), hi if isinstance(hi, str) else vr(hi))


def mov(b, d, s):
    b.valu("v_mov_b32", vr(d), s if isinstance(s, str) else vr(s))


def gload(b, op, dst, n, voff, sbase, off=0, rmw=False):
    text = f"{op} {vr(dst, n)}, {vr(voff)}, {sr(sbase, 2)}" + (f" offset:{off}" if off else "")
    return b.add(I(text, "vml", V(voff) + S(sbase, 2) + (V(dst, n) if rmw else []), V(dst, n), mem=[("vmem", "w")]))


def stamp(b, t0, t1, real=False):
    if not STAMPS:
        return
    b.fence()
    b.wait("lgkmcnt(0)")
    b.raw(("s_memrealtime " if real else "s_memtime ") + sr(sSTAMP, 2), "smem", [], S(sSTAMP, 2))
    b.wait("lgkmcnt(0)")
    mov(b, t0, sr(sSTAMP))
    mov(b, t1, sr(sDB))
    b.dsw("ds_write_b32", t1, t0, 1, 0)
    b.salu("s_add_u32", sr(sDB), sr(sDB), "4")
    b.fence()


def lstamp(b, k):
    if STAMPS:
        b.add(I(f"s_memtime {sr(80 + 2 * k, 2)}", "other", [], S(80 + 2 * k, 2)))


def lflush(b, n, t0, t1):
    if STAMPS:
        b.wait("lgkmcnt(0)")
        for k in range(n):
            mov(b, t0, sr(80 + 2 * k))
            mov(b, t1, sr(sDB))
            b.dsw("ds_write_b32", t1, t0, 1, 0)
            b.salu("s_add_u32", sr(sDB), sr(sDB), "4")
        b.fence()


def proj_tile(b, xs, a, nb, nd, qd, kd, vd0, vd1):
    for ks in range(3):
        for mt in range(3):
            b.mfma(a + 4 * mt, wa(mt, ks), xs + 4 * ks, "0" if ks == 0 else a + 4 * mt)
        for nt in range(2):
            b.mfma(a + 12 + 4 * nt, xs + 4 * ks, wv(nt, ks), "0" if ks == 0 else a + 12 + 4 * nt)
    for base, regs in ((nd + 2, (4, 6, 10)), (nd, (0, 2, 8))):
        for k, r in enumerate(regs):
            for u in range(2):
                if k == 0:
                    b.valu("v_fma_f32", vr(base + u), vr(a + r + u), vr(a + r + u), sr(sEPSQ))
                else:
                    b.valu("v_fmac_f32", vr(base + u), vr(a + r + u), vr(a + r + u), rmw=True)
    cvt(b, nb, nd, nd + 1)
    cvt(b, nb + 1, nd + 2, nd + 3)
    b.mfma(nd, SEL, nb, "0", shape="16x16x16")
    b.valu("v_rsq_f32", vr(nd + 2), vr(nd + 2))
    b.valu("v_rsq_f32", vr(nd), vr(nd))
    b.valu("v_mul_f32", vr(nd), sr(sTAU), vr(nd))
    for k, r in enumerate((4, 6, 10)):
        mul2(b, a + r, nd + 2)
        cvt(b, kd + k, a + r, a + r + 1)
    for k, r in enumerate((0, 2, 8)):
        mul2(b, a + r, nd)
        cvt(b, qd + k, a + r, a + r + 1)
    if vd0 is not None:
        cvt(b, vd0, a + 12, a + 13)
        cvt(b, vd0 + 1, a + 14, a + 15)
        g = Block()
        g.smov("exec", sr(sM33, 2))
        cvt(g, vd1, a + 16, a + 17)
        cvt(g, vd1 + 1, a + 18, a + 19)
        g.smov("exec", "-1")
        gi = b.group(g)
        gi.rd += V(vd1, 2)


def pv_and_out(b, p, o, off, masked):
    b.mfma(o + 4, VT + 8, p, "0")
    b.mfma(o, VT + 0, p, "0")
    b.mfma(o + 4, VT + 12, p + 4, o + 4)
    b.mfma(o, VT + 4, p + 4, o)
    b.valu("v_rcp_f32", vr(o + 6), vr(o + 6))
    mul2(b, o + 4, o + 6)
    cvt(b, o + 4, o + 4, o + 5)
    mul2(b, o, o + 6)
    mul2(b, o + 2, o + 6)
    cvt(b, o, o, o + 1)
    cvt(b, o + 1, o + 2, o + 3)
    if masked:
        g = Block()
        g.smov("exec", sr(sEX, 2))
        g.dsw("ds_write_b64", vOW64, o, 2, off)
        g.dsw("ds_write_b32", vOW32, o + 4, 1, off)
        g.smov("exec", "-1")
        b.group(g)
    else:
        b.dsw("ds_write_b32", vOW32, o + 4, 1, off)
        b.dsw("ds_write_b64", vOW64, o, 2, off)


def xmax(b, m, t, op):
    mov(b, t, m)
    b.valu(op, vr(t), vr(m))
    b.valu("v_max_f32", vr(m), vr(m), vr(t))


def phase1(slow):
    b = Block()
    for ks in range(3):
        b.dsr("ds_read_b128", XS[0] + 4 * ks, 4, vXADDR, 1024 * ks)
    for t in range(3):
        s = t % 2
        if t + 1 < 3:
            for ks in range(3):
                b.dsr("ds_read_b128", XS[(t + 1) % 2] + 4 * ks, 4, vXADDR, ((t + 1) * 3 + ks) * 1024)
        if t == 0:
            b.dsr("ds_read_b128", QT + 12, 4, vE3A, 0)
            b.dsr("ds_read_b128", KT + 12, 4, vE3A, 64)
            b.dsr("ds_read_u16", VT + 6, 1, vPV, 256)
            b.dsr("ds_read_u16", VT + 14, 1, vPV, 264)
        vd = (0, 2, 4)[t]
        proj_tile(b, XS[s], ACC[s], NB[s], ND[s], QT + 4 * t, KT + 4 * t, VT + vd, VT + 8 + vd)
    s = SS[0]
    for kt in (3, 0, 1, 2):
        b.mfma(s + 4 * kt, QT + 12, KT + 4 * kt, CX + 6 + 2 * kt)
    if slow:
        m, t = s + 2, s + 3
        b.valu("v_max3_f32", vr(m), vr(s), vr(s + 4), vr(s + 8))
        b.valu("v_max_f32", vr(m), vr(m), vr(s + 12))
        for ror in (8, 4, 2, 1):
            b.valu("v_max_f32_dpp", vr(t), vr(m), vr(m), mod=f"row_ror:{ror} row_mask:0xf bank_mask:0xf")
            mov(b, m, t)
        for kt in range(4):
            b.valu("v_sub_f32", vr(s + 4 * kt), vr(s + 4 * kt), vr(m))
    for kt in (3, 0, 1, 2):
        b.valu("v_exp_f32", vr(s + 4 * kt), vr(s + 4 * kt))
    cvt(b, s + 1, s, s + 4)
    cvt(b, s + 5, s + 8, s + 12)
    b.dsw("ds_write_b16", vPV, s + 1, 1, 128, mem=["p48"])
    b.dsw("ds_write_b16_d16_hi", vPV, s + 1, 1, 136, mem=["p48"])
    b.dsw("ds_write_b16", vPV, s + 5, 1, 192, mem=["p48"])
    b.dsw("ds_write_b16_d16_hi", vPV, s + 5, 1, 200, mem=["p48"])
    p48 = PT + 8
    b.dsr("ds_read_b128", p48, 4, vE3A, 128, mem=["p48"])
    b.dsr("ds_read_b128", p48 + 4, 4, vE3A, 192, mem=["p48"])
    for qt in range(3):
        s = SS[(qt + 1) % 2]
        p = PT + 8 * (qt % 2)
        o = OO[qt % 2]
        b.mfma(s + 12, KT + 12, QT + 4 * qt, CX + 2 * qt)
        for kt in range(3):
            b.mfma(s + 4 * kt, KT + 4 * kt, QT + 4 * qt, CB + (qt * 3 + kt) * 4)
        if slow:
            m, t = s + 13, s + 14
            b.valu("v_max3_f32", vr(m), vr(s), vr(s + 1), vr(s + 2))
            for k in range(3, 13, 2):
                b.valu("v_max3_f32", vr(m), vr(m), vr(s + k), vr(s + k + 1))
            xmax(b, m, t, "v_permlane32_swap_b32")
            xmax(b, m, t, "v_permlane16_swap_b32")
            for k in range(13):
                b.valu("v_sub_f32", vr(s + k), vr(s + k), vr(m))
        b.valu("v_exp_f32", vr(s + 12), vr(s + 12))
        cvt(b, p + 6, s + 12, "0")
        for k in range(6):
            b.valu("v_exp_f32", vr(s + 2 * k), vr(s + 2 * k))
            b.valu("v_exp_f32", vr(s + 2 * k + 1), vr(s + 2 * k + 1))
            cvt(b, p + k, s + 2 * k, s + 2 * k + 1)
        pv_and_out(b, p, o, qt * 3072, False)
        if qt == 0:
            pv_and_out(b, p48, OO[1], 3 * 3072, True)
    return b


vOR, vWO = T + 76, T + 77


def phase2():
    b = Block()
    OOP, Y, WST = T, T + 12, T + 36
    vOF = PT
    for ks in range(3):
        b.dsr("ds_read_b128", OOP + 4 * ks, 4, vOR, 16 * ks)
    b.dsr("ds_read_b32", vOF, 1, PT + 1, 0)
    k = 0
    for mt in range(6):
        for ks in range(3):
            w = WST + 4 * (k % 10)
            b.dsr("ds_read_b128", w, 4, vWO, (mt * 3 + ks) * 1024)
            b.mfma(Y + 4 * mt, w, OOP + 4 * ks, "0" if ks == 0 else Y + 4 * mt)
            k += 1
    a0 = PT + 2
    for k in range(6):
        for c in range(4):
            r = Y + 4 * k + c
            if k == 0:
                b.valu("v_fma_f32", vr(a0 + c), vr(r), vr(r), sr(sEPSL))
            else:
                b.valu("v_fmac_f32", vr(a0 + c), vr(r), vr(r), rmw=True)
    cvt(b, a0, a0, a0 + 1)
    cvt(b, a0 + 1, a0 + 2, a0 + 3)
    D = PT + 8
    b.mfma(D, SEL, a0, "0", shape="16x16x16")
    b.valu("v_rsq_f32", vr(D + 1), vr(D + 1))
    b.valu("v_mul_f32", vr(D + 1), f32(96.0 ** 0.5), vr(D + 1))
    for p in range(3):
        y = Y + 8 * p
        for k in range(4):
            mul2(b, y + 2 * k, D + 1)
            cvt(b, y + k, y + 2 * k, y + 2 * k + 1)
        b.bstore(y, 4, vOF, sOUT, sr(sSOFF), 64 * p)
    return b


def lane_ngl(b, vl, vn, vg):
    b.valu("v_mbcnt_lo_u32_b32", vr(vl), "-1", "0")
    b.valu("v_mbcnt_hi_u32_b32", vr(vl), "-1", vr(vl))
    b.valu("v_and_b32", vr(vn), "15", vr(vl))
    b.valu("v_lshrrev_b32", vr(vg), "4", vr(vl))


def set_pads(b, vn, vg, tmp, sfx, x3):
    ty, tx, r, cq, ck = tmp, tmp + 1, tmp + 2, tmp + 3, tmp + 4
    mov(b, cq, "%#x" % QPAD)
    mov(b, ck, "%#x" % KPAD)
    for t in range(3):
        b.valu("v_add_u32", vr(tx), str(16 * t), vr(vn))
        b.valu("v_mul_u32_u24", vr(ty), "37", vr(tx))
        b.valu("v_lshrrev_b32", vr(ty), "8", vr(ty))
        b.valu("v_mul_u32_u24", vr(r), "7", vr(ty))
        b.valu("v_sub_u32", vr(tx), vr(tx), vr(r))
        b.valu("v_lshrrev_b32", vr(ty), "2", vr(ty))
        b.valu("v_lshrrev_b32", vr(tx), "2", vr(tx))
        b.valu("v_mul_u32_u24", vr(r), sr(sFY2), vr(ty))
        b.valu("v_mad_u32_u24", vr(r), vr(tx), sfx, vr(r))
        b.vcmp("v_cmp_eq_u32", sr(sMK, 2), vr(r), vr(vg))
        b.valu("v_cndmask_b32_e64", vr(QT + 4 * t + 3), "0", vr(cq), sr(sMK, 2))
        b.valu("v_cndmask_b32_e64", vr(KT + 4 * t + 3), vr(ck), "0", sr(sMK, 2))
    if x3:
        b.vcmp("v_cmp_eq_u32", sr(sMK, 2), "5", vr(vn))
        mov(b, tx, sr(sFX5))
        b.valu("v_cndmask_b32_e64", vr(r), "0", vr(tx), sr(sMK, 2))
        b.valu("v_add_u32", vr(r), sr(sFY2), vr(r))
        b.vcmp("v_cmp_eq_u32", sr(sMK, 2), vr(r), vr(vg))
        b.valu("v_cndmask_b32_e64", vr(QT + 15), "0", vr(cq), sr(sMK, 2))
        b.valu("v_cndmask_b32_e64", vr(KT + 15), vr(ck), "0", sr(sMK, 2))


def srd(b, d, lo, nbytes):
    b.smov(sr(d), sr(lo))
    b.salu("s_and_b32", sr(d + 1), sr(lo + 1), "0xffff")
    b.smov(sr(d + 2), "%#x" % nbytes)
    b.smov(sr(d + 3), "0x00020000")


def setup(tail):
    b = Block()
    vL, vN, vG, vL16 = T + 76, T + 77, PT, PT + 1
    jp, gp, g16 = PT + 2, PT + 3, PT + 4
    b.scmp("s_cmp_ge_u32", "s2", str(NWG))
    b.branch("s_cbranch_scc1", "L_end")
    b.sload(sKA, 16, 0, 0)
    b.sload(sOUTP, 2, 0, 72)
    b.valu("v_lshrrev_b32", vr(1), "6", "v0")
    b.valu("v_and_b32", vr(vL), "63", "v0")
    b.readfirstlane(sr(sWV), vr(1))
    b.salu("s_and_b32", sr(sH), sr(sWV), "3")
    b.salu("s_lshr_b32", sr(sGR), sr(sWV), "2")
    b.salu("s_lshl_b32", "s2", "s2", "1")
    b.salu("s_add_u32", "s2", "s2", sr(sGR))
    if STAMPS:
        b.salu("s_lshl_b32", sr(sDB), sr(sWV), "7")
        b.salu("s_add_u32", sr(sDB), sr(sDB), str(DBGL))
        stamp(b, 58, 59)
        stamp(b, 58, 59, real=True)
    b.valu("v_and_b32", vr(vN), "15", vr(vL))
    b.valu("v_lshrrev_b32", vr(vG), "4", vr(vL))
    b.valu("v_lshlrev_b32", vr(vL16), "4", vr(vL))
    b.valu("v_and_b32", vr(jp), "3", vr(vL))
    b.valu("v_lshrrev_b32", vr(gp), "2", vr(vN))
    b.valu("v_and_b32", vr(g16), "48", vr(vL))
    b.salu("s_mul_i32", sr(sWY), "s2", "7282", scc=False)
    b.salu("s_lshr_b32", sr(sWY), sr(sWY), "16")
    b.salu("s_mul_i32", sr(sT), sr(sWY), "9", scc=False)
    b.salu("s_sub_u32", sr(sWX0), "s2", sr(sT))
    b.salu("s_mul_i32", sr(sWX0), sr(sWX0), "42", scc=False)
    b.salu("s_mul_i32", sr(sWY), sr(sWY), "7", scc=False)
    tok, ty, tx, row, cb_, v3, vA, vB = 2, 3, 4, 5, 6, 7, 8, 9
    b.salu("s_lshl_b32", sr(sT), sr(sH), "4")
    b.valu("v_add_u32", vr(tok), sr(sT), vr(vN))
    b.valu("v_mul_u32_u24", vr(ty), "37", vr(tok))
    b.valu("v_lshrrev_b32", vr(ty), "8", vr(ty))
    b.valu("v_mul_u32_u24", vr(tx), "7", vr(ty))
    b.valu("v_sub_u32", vr(tx), vr(tok), vr(tx))
    b.salu("s_add_u32", sr(sT), sr(sWY), "3")
    b.valu("v_add_u32", vr(row), sr(sT), vr(ty))
    b.valu("v_subrev_u32", vr(ty), "378", vr(row))
    b.valu("v_min_u32", vr(row), vr(row), vr(ty))
    b.valu("v_mul_u32_u24", vr(row), "378", vr(row))
    b.valu("v_add_u32", vr(vA), vr(row), vr(tx))
    b.valu("v_mul_u32_u24", vr(vA), "192", vr(vA))
    b.valu("v_add_u32", vr(vA), vr(vA), vr(g16))
    b.salu("s_add_u32", sr(sXOFF), sr(sWX0), "3")
    b.salu("s_mul_i32", sr(sXOFF), sr(sXOFF), "192", scc=False)
    b.salu("s_add_u32", sr(sT), sr(sWY), "9")
    b.salu("s_sub_u32", sr(sT1), sr(sT), "378")
    b.salu("s_min_u32", sr(sT), sr(sT), sr(sT1))
    b.salu("s_mul_i32", sr(sT), sr(sT), "378", scc=False)
    b.salu("s_add_u32", sr(sT1), sr(sWX0), "9")
    b.valu("v_mul_u32_u24", vr(cb_), "7", vr(vN))
    b.valu("v_add_u32", vr(cb_), sr(sT1), vr(cb_))
    b.valu("v_subrev_u32", vr(ty), "378", vr(cb_))
    b.valu("v_min_u32", vr(cb_), vr(cb_), vr(ty))
    b.valu("v_add_u32", vr(v3), sr(sT), vr(cb_))
    b.valu("v_mul_u32_u24", vr(v3), "192", vr(v3))
    b.valu("v_add_u32", vr(v3), vr(v3), vr(g16))
    set_exec(b, lmask(lambda n, g: n >= 6))
    mov(b, v3, "0x40000000")
    b.smov("exec", "-1")
    vRC, vA1o, vA2o = 10, 11, 12
    b.valu("v_min_u32", vr(vRC), "168", "v0")
    b.valu("v_lshlrev_b32", vr(vRC), "2", vr(vRC))
    b.valu("v_lshlrev_b32", vr(vA1o), "1", vr(vN))
    b.valu("v_lshlrev_b32", vr(vA2o), "1", vr(g16))
    b.valu("v_lshl_add_u32", vr(vA2o), vr(jp), "1", vr(vA2o))
    WOR = 24
    s_, hh, w_, d1, d2 = 18, 19, 20, 21, 22
    vWR = [23, 15]
    b.salu("s_lshl_b32", sr(sT), sr(sH), "3")
    b.salu("s_sub_u32", sr(sT), sr(sT), "8")
    for half in range(2):
        if half:
            b.salu("s_add_u32", sr(sT), sr(sT), "4")
        b.valu("v_add_u32", vr(s_), sr(sT), vr(jp))
        b.valu("v_mul_u32_u24", vr(hh), "43", vr(s_))
        b.valu("v_lshrrev_b32", vr(hh), "8", vr(hh))
        b.valu("v_mul_u32_u24", vr(w_), "6", vr(hh))
        b.valu("v_sub_u32", vr(w_), vr(s_), vr(w_))
        b.valu("v_and_b32", vr(d1), "1", vr(hh))
        b.valu("v_lshl_add_u32", vr(w_), vr(d1), "2", vr(w_))
        b.valu("v_subrev_u32", vr(d1), "6", vr(w_))
        b.valu("v_min_u32", vr(w_), vr(w_), vr(d1))
        b.vcmp("v_cmp_gt_u32", sr(sMK, 2), "4", vr(w_))
        b.valu("v_lshl_add_u32", vr(d1), vr(gp), "2", vr(w_))
        b.valu("v_lshl_add_u32", vr(d2), vr(gp), "1", vr(w_))
        b.valu("v_add_u32", vr(d2), "12", vr(d2))
        b.valu("v_cndmask_b32_e64", vr(d1), vr(d2), vr(d1), sr(sMK, 2))
        b.valu("v_mad_u32_u24", vr(d1), vr(hh), "24", vr(d1))
        b.valu("v_mul_u32_u24", vr(d1), "192", vr(d1))
        b.valu("v_add_u32", vr(vWR[half]), vr(d1), vr(g16))
    b.salu("s_lshl_b32", sr(sT), sr(sWV), "10")
    b.smov("m0", sr(sT))
    lstamp(b, 0)
    b.wait("lgkmcnt(0)")
    lstamp(b, 1)
    srd(b, sW, sKA + 2, 55296)
    RCV, A1, A2 = 13, 14, 16
    b.scmp("s_cmp_ge_u32", sr(sWV), "3")
    b.branch("s_cbranch_scc1", "L_skipsm")
    gload(b, "global_load_dword", RCV, 1, vRC, sKA + 12)
    U = 18
    UL = [18, 19, 20, 21, 22, 1]
    gload(b, "global_load_ushort", UL[0], 1, vA1o, sKA + 8)
    gload(b, "global_load_ushort", UL[1], 1, vA1o, sKA + 8, 32)
    for k in range(4):
        gload(b, "global_load_ushort", UL[2 + k], 1, vA2o, sKA + 10, 8 * k)
    b.label("L_skipsm")
    b.sload(sLS, 2, sKA + 6, 0)
    b.scmp("s_cmp_lt_u32", sr(sWV), "5")
    b.branch("s_cbranch_scc1", "L_skipwo")
    for half in range(2):
        for p in range(3):
            gload(b, "global_load_dwordx4", WOR + (half * 3 + p) * 4, 4, vWR[half], sKA + 4, 64 * p)
    b.label("L_skipwo")
    fill = Block()
    srd(fill, sX, sKA + 0, XBYTES)
    srd(fill, sOUT, sOUTP, XBYTES)
    fill.smov(sr(sEPSQ), f32(1e-12 / 8))
    fill.smov(sr(sEPSL), f32(1e-5 * 96 / 16))
    fill.smov(sr(sM33), "0x33333333")
    fill.smov(sr(sM33 + 1), "0x33333333")
    fill.smov(sr(sM1), "0x00010001")
    fill.smov(sr(sM1 + 1), "0x00010001")
    fill.salu("s_mul_i32", sr(sXB), sr(sGR), str(XBG), scc=False)
    fill.salu("s_add_u32", sr(sXB), sr(sXB), str(XB0))
    fill.salu("s_lshl_b32", sr(sOFFS), sr(sGR), "11")
    fill.salu("s_add_u32", sr(sOFFS), sr(sOFFS), str(OFFS))
    fill.salu("s_mul_i32", sr(sOBG), sr(sGR), str(OBG), scc=False)
    fl = list(fill.ins)
    for k in range(6):
        b.dma(vL16, sW, "m0")
        b.salu("s_add_u32", "m0", "m0", "8192")
        b.add(fl.pop(0))
        b.add(fl.pop(0))
    b.ins.extend(fl)
    b.scmp("s_cmp_ge_u32", sr(sWV), "6")
    b.branch("s_cbranch_scc1", "L_skipw")
    b.dma(vL16, sW, "m0")
    b.label("L_skipw")
    for ks in range(3):
        b.bload(XS[0] + 4 * ks, 4, v3, sX, "0", 64 * ks)
    b.scmp("s_cmp_eq_u32", sr(sH), "3")
    b.branch("s_cbranch_scc1", "L_skipx0")
    b.salu("s_mul_i32", sr(sT), sr(sH), "3072", scc=False)
    b.salu("s_add_u32", "m0", sr(sT), sr(sXB))
    b.smov(sr(sT1), sr(sXOFF))
    for ks in range(3):
        b.dma(vA, sX, sr(sT1))
        if ks < 2:
            b.salu("s_add_u32", "m0", "m0", "1024")
            b.salu("s_add_u32", sr(sT1), sr(sT1), "64")
    b.label("L_skipx0")
    lstamp(b, 2)
    lstamp(b, 3)
    b.salu("s_add_u32", sr(sT), sr(sWX0), "38")
    b.valu("v_add_u32", vr(cb_), sr(sT), vr(tx))
    b.valu("v_subrev_u32", vr(ty), "378", vr(cb_))
    b.valu("v_min_u32", vr(cb_), vr(cb_), vr(ty))
    b.valu("v_add_u32", vr(vB), vr(row), vr(cb_))
    b.valu("v_mul_u32_u24", vr(vB), "192", vr(vB))
    b.valu("v_add_u32", vr(vB), vr(vB), vr(g16))
    va = 2
    b.salu("s_lshl_b32", sr(sT), sr(sH), "8")
    b.salu("s_add_u32", sr(sT), sr(sT), sr(sOFFS))
    b.valu("v_lshl_add_u32", vr(va), vr(vL), "2", sr(sT))
    b.scmp("s_cmp_eq_u32", sr(sH), "3")
    b.salu("s_cselect_b64", sr(sMK, 2), "-1", "0", scc=False, rscc=True)
    b.valu("v_cndmask_b32_e64", vr(vA), vr(vA), vr(v3), sr(sMK, 2))
    b.dsw("ds_write_b32", va, vB, 1, 1024)
    b.dsw("ds_write_b32", va, vA, 1, 0)
    one2, HV = 3, PT + 5
    F, ONES = 48, 54
    E2, E3m = VT, PT + 8
    A1K, A2K = ACC[0], ACC[0] + 8
    Z = ACC[0] + 16
    zero_list = ([SEL, SEL + 1] + [VT + k for k in range(7, 16) if k != 14] + [PT + 7, PT + 15] + [QT + 4 * t + 3 for t in range(4)]
                 + [KT + 4 * t + 3 for t in range(4)] + list(range(F, F + 6)) + list(range(E2, E2 + 4)) + list(range(E3m, E3m + 4))
                 + list(range(A1K, A1K + 20)))
    for r in zero_list:
        mov(b, r, "0")
    b.scmp("s_cmp_lg_u32", sr(sWV), "3")
    b.branch("s_cbranch_scc1", "L_nodum")
    b.valu("v_add_u32", vr(va), str(DUM), vr(vL16))
    b.dsw("ds_write_b128", va, Z, 4, 0)
    b.dsw("ds_write_b128", va, Z, 4, 1920 - 1024)
    mov(b, va, str(SYNC))
    b.dsw("ds_write_b128", va, Z, 4, 0)
    b.dsw("ds_write_b128", va, Z, 4, 16)
    b.label("L_nodum")
    mov(b, one2, "0x3f803f80")
    for k in range(4):
        mov(b, ONES + k, one2)
    mov(b, HV, "0x3f80")
    set_exec(b, lmask(lambda n, g: n & 1))
    mov(b, HV, "0x3f800000")
    set_exec(b, lmask(lambda n, g: n % 4 in (0, 1)))
    mov(b, SEL, one2)
    set_exec(b, lmask(lambda n, g: n % 4 in (1, 2)))
    mov(b, SEL + 1, one2)
    set_exec(b, lmask(lambda n, g: n % 4 == 2))
    for k in range(8, 14):
        mov(b, VT + k, one2)
    set_exec(b, lmask(lambda n, g: (n >> 1) == 2 * g))
    mov(b, F + 2, HV)
    set_exec(b, lmask(lambda n, g: (n >> 1) == 2 * g + 1))
    mov(b, F + 3, HV)
    for r in range(4):
        set_exec(b, lmask(lambda n, g: g == ((n & 3) >> 1) and (n >> 2) == r))
        mov(b, E2 + r, HV)
        set_exec(b, lmask(lambda n, g: g == 2 and (n & 3) < 2 and (n >> 2) == r))
        mov(b, E3m + r, HV)
    b.smov("exec", "-1")
    pat = 4
    vV3W, vQ3W, vTR, vAP = PT + 6, PT + 12, PT + 13, PT + 14
    b.salu("s_mul_i32", sr(sT), sr(sWV), str(E3W), scc=False)
    b.salu("s_add_u32", sr(sT), sr(sT), str(E3))
    b.valu("v_add_u32", vr(vE3A), sr(sT), vr(g16))
    b.valu("v_lshlrev_b32", vr(pat), "4", vr(gp))
    b.valu("v_lshl_add_u32", vr(pat), vr(jp), "1", vr(pat))
    b.valu("v_add_u32", vr(vPV), str(DUM), vr(pat))
    set_exec(b, 0xffff)
    b.valu("v_add_u32", vr(vPV), sr(sT), vr(pat))
    b.smov("exec", "-1")
    b.valu("v_mul_u32_u24", vr(vV3W), str(4 * EST), vr(vG))
    b.valu("v_add3_u32", vr(vV3W), vr(vV3W), vr(pat), sr(sT))
    b.valu("v_mul_u32_u24", vr(vQ3W), str(EST), vr(vN))
    b.valu("v_add_u32", vr(vQ3W), vr(vQ3W), vr(vE3A))
    b.valu("v_add_u32", vr(vXADDR), sr(sXB), vr(vL16))
    b.salu("s_lshl_b32", sr(sT), sr(sGR), "4")
    b.salu("s_add_u32", sr(sT), sr(sT), str(SYNC))
    mov(b, vSYNC, sr(sT))
    b.valu("v_mul_u32_u24", vr(vOW64), "48", vr(vL))
    b.salu("s_mul_i32", sr(sT), sr(sH), "12", scc=False)
    b.salu("s_and_b32", sr(sT1), sr(sH), "1")
    b.salu("s_lshl_b32", sr(sT1), sr(sT1), "2")
    b.salu("s_add_u32", sr(sO64), sr(sT), sr(sT1))
    b.salu("s_lshl_b32", sr(sT1), sr(sT1), "1")
    b.salu("s_add_u32", sr(sT), sr(sT), str(OB0 + 8))
    b.salu("s_add_u32", sr(sT), sr(sT), sr(sOBG))
    b.salu("s_sub_u32", sr(sT), sr(sT), sr(sT1))
    b.valu("v_add_u32", vr(vOW32), sr(sT), vr(vOW64))
    b.salu("s_add_u32", sr(sT), sr(sO64), sr(sOBG))
    b.valu("v_add_u32", vr(vOW64), sr(sT), vr(vOW64))
    b.salu("s_mul_i32", sr(sT), sr(sH), "48", scc=False)
    b.valu("v_lshl_add_u32", vr(vTR), vr(vG), "3", vr(gp))
    b.valu("v_mul_u32_u24", vr(vTR), "576", vr(vTR))
    b.valu("v_lshl_add_u32", vr(vTR), vr(jp), "3", vr(vTR))
    b.valu("v_add_u32", vr(vTR), sr(sT), vr(vTR))
    b.valu("v_lshl_add_u32", vr(vAP), vr(gp), "3", vr(jp))
    b.valu("v_mul_u32_u24", vr(vAP), "576", vr(vAP))
    b.valu("v_min_u32", vr(5), "2", vr(vG))
    b.valu("v_mul_u32_u24", vr(5), "192", vr(5))
    b.salu("s_add_u32", sr(sT), sr(sT), "32")
    b.valu("v_add3_u32", vr(vAP), vr(vAP), vr(5), sr(sT))
    b.scmp("s_cmp_eq_u32", sr(sWY), str(53 * 7))
    b.salu("s_cselect_b32", sr(sFY2), "2", "0", scc=False, rscc=True)
    b.scmp("s_cmp_eq_u32", sr(sWX0), str(48 * 7))
    b.salu("s_cselect_b32", sr(sFX5), "1", "0", scc=False, rscc=True)
    b.salu("s_or_b32", sr(sT), sr(sFY2), sr(sFX5))
    b.branch("s_cbranch_scc1", "L_pads0")
    b.label("L_pads0r")
    tail.label("L_pads0")
    set_pads(tail, vN, vG, 5, "0", True)
    tail.branch("s_branch", "L_pads0r")
    b.wait("lgkmcnt(0)")
    b.salu("s_lshl_b32", sr(sT), sr(sH), "4")
    b.salu("s_lshr_b64", sr(sLS, 2), sr(sLS, 2), sr(sT))
    b.salu("s_lshl_b32", sr(sT), sr(sLS), "16")
    tv = 5
    mov(b, tv, sr(sT))
    b.valu("v_min_f32", vr(tv), f32(4.59375), vr(tv))
    b.valu("v_max_f32", vr(tv), f32(-100.0), vr(tv))
    b.valu("v_mul_f32", vr(tv), f32(LOG2E), vr(tv))
    b.valu("v_exp_f32", vr(tv), vr(tv))
    FQ, KY, g148 = 6, XS[1], 9
    b.salu("s_mul_i32", sr(sT2), sr(sH), str(TABH), scc=False)
    b.salu("s_add_u32", sr(sT2), sr(sT2), str(TAB))
    cvt(b, tv, tv, tv)
    b.valu("v_mul_u32_u24", vr(g148), "148", vr(vG))
    b.valu("v_lshlrev_b32", vr(tv), "16", vr(tv))
    for qt in range(3):
        b.valu("v_add_u32", vr(FQ + qt), str(16 * qt), vr(vN))
        if qt == 0:
            b.readfirstlane(sr(sSLOW), vr(tv))
            b.valu("v_mul_f32", vr(tv), f32(LOG2E), vr(tv))
        b.valu("v_mul_u32_u24", vr(10), "37", vr(FQ + qt))
        if qt == 0:
            b.readfirstlane(sr(sTAU), vr(tv))
        b.valu("v_lshrrev_b32", vr(10), "8", vr(10))
        b.valu("v_lshl_add_u32", vr(FQ + qt), vr(FQ + qt), "2", sr(sT2))
        b.valu("v_mad_u32_u24", vr(FQ + qt), vr(10), "24", vr(FQ + qt))
    b.scmp("s_cmp_gt_u32", sr(sSLOW), f32(19.5))
    b.salu("s_cselect_b32", sr(sSLOW), "1", "0", scc=False, rscc=True)
    for kt in range(3):
        for j in range(4):
            r = KY + kt * 4 + j
            b.valu("v_add_u32", vr(r), str(37 * (16 * kt + j)), vr(g148))
            b.valu("v_lshrrev_b32", vr(r), "8", vr(r))
    b.scmp("s_cmp_ge_u32", sr(sWV), "3")
    b.branch("s_cbranch_scc1", "L_skiptab")
    b.wait("vmcnt(13)")
    lstamp(b, 3)
    b.valu("v_lshl_or_b32", vr(A1), vr(UL[1]), "16", vr(UL[0]))
    b.valu("v_lshl_or_b32", vr(A2), vr(UL[3]), "16", vr(UL[2]))
    b.valu("v_lshl_or_b32", vr(A2 + 1), vr(UL[5]), "16", vr(UL[4]))
    for k in range(4):
        set_exec(b, lmask(lambda n, g: g == k))
        mov(b, A1K + 2 * k, A1)
        set_exec(b, lmask(lambda n, g: (n >> 2) == k))
        mov(b, A2K + 2 * k, A2)
        mov(b, A2K + 2 * k + 1, A2 + 1)
    b.smov("exec", "-1")
    c = Block()
    HD, OUT4 = T + 44, T + 60
    RB = 10
    mov(c, RB, RCV)
    mov(c, RB + 1, "0")
    for k in range(4):
        c.mfma(HD + 4 * k, A1K + 2 * k, RB, "0", shape="16x16x16")
    for k in range(4):
        h_ = HD + 4 * k
        cvt(c, h_, h_, h_ + 1)
        cvt(c, h_ + 1, h_ + 2, h_ + 3)
        c.valu("v_pk_max_i16", vr(h_), vr(h_), "0")
        c.valu("v_pk_max_i16", vr(h_ + 1), vr(h_ + 1), "0")
        c.mfma(OUT4, A2K + 2 * k, h_, "0" if k == 0 else OUT4, shape="16x16x16")
    mov(c, 12, f32(-8.0 * LOG2E))
    mov(c, 11, f32(16.0 * LOG2E))
    for hh_ in range(4):
        o = OUT4 + hh_
        cvt(c, o, o, o)
        c.valu("v_lshlrev_b32", vr(o), "16", vr(o))
        c.valu("v_mul_f32", vr(o), f32(-LOG2E), vr(o))
        c.valu("v_exp_f32", vr(o), vr(o))
        c.valu("v_add_f32", vr(o), "1.0", vr(o))
        c.valu("v_rcp_f32", vr(o), vr(o))
        cvt(c, o, o, o)
        c.valu("v_lshlrev_b32", vr(o), "16", vr(o))
        c.valu("v_fma_f32", vr(o), vr(o), vr(11), vr(12))
    c.valu("v_min_u32", vr(RB), "175", "v0")
    c.valu("v_lshlrev_b32", vr(RB), "2", vr(RB))
    for hh_ in range(4):
        c.dsw("ds_write_b32", RB, OUT4 + hh_, 1, TAB + TABH * hh_)
    sch, _ = schedule(c.ins)
    b.ins.extend(sch)
    b.label("L_skiptab")
    WRES = T + 44
    b.scmp("s_cmp_lt_u32", sr(sWV), "5")
    b.branch("s_cbranch_scc1", "L_skipwo2")
    b.wait("vmcnt(9)")
    c = Block()
    DS_ = [ACC[0], ACC[0] + 4]
    DM = [ACC[0] + 8, ACC[0] + 12, ACC[0] + 16]
    for half in range(2):
        rows = WOR + half * 12
        ds_ = DS_[half]
        for p in range(3):
            c.mfma(ds_, rows + 4 * p, ONES, "0" if p == 0 else ds_)
        for k in range(4):
            c.valu("v_mul_f32", vr(ds_ + k), f32(-1.0 / 96.0), vr(ds_ + k))
    for half in range(2):
        rows = WOR + half * 12
        for mt in range(6):
            d = DM[mt % 3]
            c.mfma(d, rows + 4 * (mt // 2), F + (2 if mt % 2 == 0 else 0), DS_[half])
            cvt(c, WRES + 4 * mt + 2 * half, d, d + 1)
            cvt(c, WRES + 4 * mt + 2 * half + 1, d + 2, d + 3)
    c.salu("s_lshl_b32", sr(sT), sr(sH), "10")
    c.salu("s_add_u32", sr(sT), sr(sT), str(WOF - 1024))
    c.valu("v_add_u32", vr(10), sr(sT), vr(vL16))
    for mt in range(6):
        c.dsw("ds_write_b128", 10, WRES + 4 * mt, 4, mt * 3072)
    sch, _ = schedule(c.ins)
    b.ins.extend(sch)
    b.label("L_skipwo2")
    lstamp(b, 4)
    lflush(b, 5, 58, 59)
    b.raw("s_barrier", "barrier")
    c = Block()
    mov(c, 11, "-24")
    c.salu("s_lshl_b32", sr(sT), sr(sT2), "1")
    c.salu("s_add_u32", sr(sT), sr(sT), "672")
    for qt in range(3):
        mov(c, CX + 2 * qt, FQ + qt)
        c.dsr("ds_read_b32", CX + 2 * qt, 1, CX + 2 * qt, 0)
        c.valu("v_sub_u32", vr(CX + 6 + 2 * qt), sr(sT), vr(FQ + qt))
        c.dsr("ds_read_b32", CX + 6 + 2 * qt, 1, CX + 6 + 2 * qt, 0)
        c.valu("v_sub_u32", vr(FQ + qt), vr(FQ + qt), vr(g16))
    mov(c, CX + 12, sr(sT2))
    c.dsr("ds_read_b32", CX + 12, 1, CX + 12, 336)
    for qt in range(3):
        for kt in range(3):
            for j in range(4):
                r = CB + (qt * 3 + kt) * 4 + j
                c.valu("v_mad_i32_i24", vr(r), vr(KY + kt * 4 + j), vr(11), vr(FQ + qt))
                c.dsr("ds_read_b32", r, 1, r, 336 - 64 * kt - 4 * j)
    b.ins.extend(c.ins)
    stamp(b, 58, 59)
    b.wait("vmcnt(0)")
    b.fence()
    b.raw("s_barrier", "barrier")
    stamp(b, T + 72, T + 73)
    c = Block()
    for ks in range(3):
        for hf in range(2):
            ro = (32 * ks + 4 * hf) * 576
            ap = XS[1] + 4 * ((ks * 2 + hf) % 3)
            c.dsr("ds_read_b128", ap, 4, vAP, ro)
            c.dsr("ds_read_b64_tr_b16", wa(0, ks) + 2 * hf, 2, vTR, ro)
            c.dsr("ds_read_b64_tr_b16", wa(1, ks) + 2 * hf, 2, vTR, ro + 192)
            c.dsr("ds_read_b64_tr_b16", wv(0, ks) + 2 * hf, 2, vTR, ro + 384)
            d = ACC[0] + 8 * ((ks * 2 + hf) % 2)
            c.mfma(d, ap, E2, "0")
            c.mfma(d + 4, ap, E3m, "0")
            cvt(c, wa(2, ks) + 2 * hf, d, d + 1)
            cvt(c, wa(2, ks) + 2 * hf + 1, d + 2, d + 3)
            cvt(c, wv(1, ks) + 2 * hf, d + 4, d + 5)
            cvt(c, wv(1, ks) + 2 * hf + 1, d + 6, d + 7)
    proj_tile(c, XS[0], ACC[0], XS[1], ND[0], QT + 12, KT + 12, None, None)
    a = ACC[0]
    cvt(c, a + 12, a + 12, a + 13)
    cvt(c, a + 13, a + 14, a + 15)
    cvt(c, a + 16, a + 16, a + 17)
    cvt(c, a + 17, a + 18, a + 19)
    c.valu("v_or_b32", vr(a + 16), vr(a + 16), vr(VT + 8))
    c.valu("v_or_b32", vr(a + 17), vr(a + 17), vr(VT + 8))
    c.smov(sr(sI), "0")
    c.smov(sr(sDOB), str(OBD))
    c.smov(sr(sDXB), str(XBD))
    c.smov(sr(sCNT), "0")
    c.salu("s_sub_u32", sr(sSOFF), sr(sXOFF), "1344")
    sch, _ = schedule(c.ins)
    b.ins.extend(sch)
    set_exec(b, 0xffffffff)
    for nt in range(2):
        b.dsw("ds_write_b16", vV3W, a + 12 + 4 * nt, 1, 256 + 8 * nt)
        b.dsw("ds_write_b16_d16_hi", vV3W, a + 12 + 4 * nt, 1, EST + 256 + 8 * nt)
    set_exec(b, 0xffff)
    for nt in range(2):
        b.dsw("ds_write_b16", vV3W, a + 13 + 4 * nt, 1, 2 * EST + 256 + 8 * nt)
        b.dsw("ds_write_b16_d16_hi", vV3W, a + 13 + 4 * nt, 1, 3 * EST + 256 + 8 * nt)
    set_exec(b, lmask(lambda n, g: n < 6))
    b.dsw("ds_write_b128", vQ3W, QT + 12, 4, 0)
    b.dsw("ds_write_b128", vQ3W, KT + 12, 4, 64)
    b.smov("exec", "-1")
    b.fence()
    b.raw("s_barrier", "barrier")
    return b


def main_loop(tail):
    b = Block()
    b.label("L_loop")
    stamp(b, T, T + 1)
    if PRIO:
        b.salu("s_add_u32", sr(sT), sr(sGR), sr(sI))
        b.salu("s_and_b32", sr(sT), sr(sT), "1")
        b.branch("s_cbranch_scc1", "L_pr1")
        b.raw("s_setprio 0")
        b.branch("s_branch", "L_pr2")
        b.label("L_pr1")
        b.raw("s_setprio 1")
        b.label("L_pr2")
    b.salu("s_add_u32", sr(sTILE), sr(sH), sr(sI))
    b.salu("s_add_u32", sr(sTILE), sr(sTILE), "3")
    b.salu("s_and_b32", sr(sTILE), sr(sTILE), "3")
    b.valu("v_subrev_u32", vr(vWO), sr(sXB), vr(vXADDR))
    b.salu("s_add_u32", sr(sXOFF), sr(sXOFF), "1344")
    b.valu("v_lshrrev_b32", vr(PT + 1), "2", vr(vWO))
    b.scmp("s_cmp_eq_u32", sr(sTILE), "3")
    b.branch("s_cbranch_scc1", "L_t3")
    b.scmp("s_cmp_eq_u32", sr(sI), "0")
    b.branch("s_cbranch_scc1", "L_nop2")
    b.salu("s_mul_i32", sr(sT), sr(sTILE), "3072", scc=False)
    b.salu("s_add_u32", sr(sT), sr(sT), sr(sDOB))
    b.salu("s_sub_u32", sr(sT), sr(sT), sr(sO64))
    b.valu("v_add_u32", vr(vOR), sr(sT), vr(vOW64))
    b.salu("s_lshl_b32", sr(sT1), sr(sTILE), "8")
    b.salu("s_add_u32", sr(sT1), sr(sT1), sr(sOFFS))
    b.scmp("s_cmp_lt_u32", sr(sI), "6")
    b.branch("s_cbranch_scc1", "L_p2go")
    b.smov(sr(sSOFF), "0")
    b.salu("s_add_u32", sr(sT1), sr(sT1), "1024")
    b.label("L_p2go")
    b.valu("v_add_u32", vr(PT + 1), sr(sT1), vr(PT + 1))
    b.valu("v_add_u32", vr(vWO), str(WOF), vr(vWO))
    sch, t2 = schedule(phase2().ins)
    b.ins.extend(sch)
    b.scmp("s_cmp_eq_u32", sr(sI), "6")
    b.branch("s_cbranch_scc1", "L_fin" if STAMPS else "L_end")
    b.label("L_nop2")
    stamp(b, T, T + 1)
    b.salu("s_lshl_b64", sr(sEX, 2), sr(sM1, 2), sr(sI))
    b.scmp("s_cmp_eq_u32", sr(sI), "5")
    b.branch("s_cbranch_scc1", "L_pads5")
    b.label("L_p1")
    b.scmp("s_cmp_lg_u32", sr(sSLOW), "0")
    b.branch("s_cbranch_scc1", "L_p1slow")
    p1 = phase1(False)
    sch, t1 = schedule(p1.ins)
    b.ins.extend(sch)
    b.label("L_p1done")
    stamp(b, T, T + 1)
    b.valu("v_add_u32", vr(vXADDR), sr(sDXB), vr(vXADDR))
    b.valu("v_add_u32", vr(vOW64), sr(sDOB), vr(vOW64))
    b.valu("v_add_u32", vr(vOW32), sr(sDOB), vr(vOW32))
    b.valu("v_add_u32", vr(vE3A), str(EST), vr(vE3A))
    b.valu("v_add_u32", vr(vPV), str(EST), vr(vPV))
    b.salu("s_add_u32", sr(sXB), sr(sXB), sr(sDXB))
    b.salu("s_sub_u32", sr(sDXB), "0", sr(sDXB))
    b.salu("s_sub_u32", sr(sDOB), "0", sr(sDOB))
    b.salu("s_add_u32", sr(sSOFF), sr(sSOFF), "1344")
    b.salu("s_add_u32", sr(sI), sr(sI), "1")
    b.scmp("s_cmp_lg_u32", sr(sTILE), "3")
    b.branch("s_cbranch_scc1", "L_now")
    b.wait("vmcnt(0)")
    b.label("L_now")
    b.salu("s_add_u32", sr(sCNT), sr(sCNT), "4")
    mov(b, T, "1")
    b.smov("exec", "1")
    b.add(I(f"ds_add_u32 {vr(vSYNC)}, {vr(T)}", "dsw", V(vSYNC) + V(T), []))
    b.smov("exec", "-1")
    b.add(I("L_spin:", "label"))
    b.dsr("ds_read_b32", T + 1, 1, vSYNC, 0)
    b.readfirstlane(sr(sT), vr(T + 1))
    b.scmp("s_cmp_ge_u32", sr(sT), sr(sCNT))
    b.branch("s_cbranch_scc1", "L_loop")
    b.raw("s_sleep 1")
    b.branch("s_branch", "L_spin")
    b.label("L_t3")
    b.scmp("s_cmp_eq_u32", sr(sI), "6")
    b.branch("s_cbranch_scc1", "L_p2x")
    b.scmp("s_cmp_eq_u32", sr(sI), "5")
    b.branch("s_cbranch_scc1", "L_nop2")
    b.smov(sr(sT1), sr(sOFFS))
    b.smov(sr(sT), sr(sXOFF))
    b.scmp("s_cmp_lg_u32", sr(sI), "4")
    b.branch("s_cbranch_scc1", "L_nob")
    b.salu("s_add_u32", sr(sT1), sr(sOFFS), "1024")
    b.smov(sr(sT), "0")
    b.label("L_nob")
    b.valu("v_add_u32", vr(PT + 1), sr(sT1), vr(PT + 1))
    for t in range(3):
        b.dsr("ds_read_b32", T + t, 1, PT + 1, 256 * t)
    b.salu("s_add_u32", "m0", sr(sXB), sr(sDXB))
    b.salu("s_add_u32", sr(sT2), sr(sT), "64")
    b.salu("s_add_u32", sr(sT3), sr(sT), "128")
    for t in range(3):
        for ks in range(3):
            b.dma(T + t, sX, sr((sT, sT2, sT3)[ks]))
            if (t, ks) != (2, 2):
                b.salu("s_add_u32", "m0", "m0", "1024")
    b.branch("s_branch", "L_nop2")
    b.label("L_p2x")
    b.smov(sr(sSOFF), "0")
    b.salu("s_add_u32", sr(sT1), sr(sOFFS), "768")
    b.salu("s_add_u32", sr(sT), sr(sOBG), str(OB0 + 3 * 3072))
    b.valu("v_lshrrev_b32", vr(PT), "4", vr(vWO))
    b.valu("v_mul_u32_u24", vr(vOR), "48", vr(PT))
    b.valu("v_and_b32", vr(PT), "1", vr(PT))
    b.valu("v_mul_u32_u24", vr(PT), str(OBD), vr(PT))
    b.valu("v_add_u32", vr(vOR), vr(vOR), vr(PT))
    b.valu("v_add_u32", vr(vOR), sr(sT), vr(vOR))
    b.branch("s_branch", "L_p2go")
    if STAMPS:
        b.label("L_fin")
        stamp(b, T, T + 1)
        b.wait("vmcnt(0)")
        stamp(b, T, T + 1)
        stamp(b, T, T + 1, real=True)
        b.sload(56, 2, 0, 88)
        b.wait("lgkmcnt(0)")
        b.smov(sr(58), "0x10000000")
        b.smov(sr(59), "0x00020000")
        lane_ngl(b, T, T + 1, T + 2)
        b.valu("v_lshlrev_b32", vr(T), "2", vr(T))
        b.salu("s_lshl_b32", sr(sT), sr(sWV), "7")
        b.salu("s_add_u32", sr(sT1), sr(sT), str(DBGL))
        b.salu("s_lshl_b32", sr(sT), sr(sH), "7")
        b.valu("v_add_u32", vr(T + 1), sr(sT1), vr(T))
        b.dsr("ds_read_b32", T + 2, 1, T + 1, 0)
        b.salu("s_lshl_b32", sr(sT1), "s2", "9")
        b.salu("s_add_u32", sr(sT), sr(sT), sr(sT1))
        set_exec(b, 0xffffffff)
        b.bstore(T + 2, 1, T, 56, sr(sT))
        b.wait("vmcnt(0)")
    b.label("L_end")
    b.raw("s_endpgm", "end")
    tail.label("L_pads5")
    tail.scmp("s_cmp_eq_u32", sr(sFX5), "0")
    tail.branch("s_cbranch_scc1", "L_p1")
    lane_ngl(tail, T, T + 1, T + 2)
    set_pads(tail, T + 1, T + 2, T + 3, sr(sFX5), False)
    tail.branch("s_branch", "L_p1")
    tail.label("L_p1slow")
    sch, t1s = schedule(phase1(True).ins)
    tail.ins.extend(sch)
    tail.branch("s_branch", "L_p1done")
    print(f"; est cycles: phase1 {t1} slow {t1s} phase2 {t2}", file=sys.stderr)
    return b


HEADER = open("standalone__window_attn_swin_v2__vision.s.ref").read().split("; Override launch")[0]


def build():
    tail = Block()
    b = setup(tail)
    b.extend(main_loop(tail))
    b.extend(tail)
    ins, nops = finalize(b.ins)
    print(f"; instructions {sum(1 for i in ins if i.kind not in ('label','comment','fence'))} nop-states {nops}", file=sys.stderr)
    body = render(ins)
    txt = HEADER + f"""; Generated by work/gen3.py (hand-written generator): workgroup = 2 groups of 4 waves (4 heads), 6 windows per group.
; @launch grid=({NWG},1,1) block=(512,1,1) lds={LDS_BYTES + (1024 if STAMPS else 0)}
.amdgcn_target "amdgcn-amd-amdhsa--gfx950"
.text
.globl {KNAME}
.p2align 8
.type {KNAME},@function
{KNAME}:
{body}
.section .rodata,"a"
.p2align 6
.amdhsa_kernel {KNAME}
  .amdhsa_next_free_vgpr {NVGPR}
  .amdhsa_next_free_sgpr {NSGPR}
  .amdhsa_accum_offset {NVGPR}
  .amdhsa_group_segment_fixed_size 0
  .amdhsa_kernarg_size 96
  .amdhsa_user_sgpr_count 2
  .amdhsa_user_sgpr_kernarg_segment_ptr 1
  .amdhsa_system_sgpr_workgroup_id_x 1
.end_amdhsa_kernel
"""
    return txt


if __name__ == "__main__":
    out = sys.argv[1] if len(sys.argv) > 1 else "standalone__window_attn_swin_v2__vision.s"
    open(out, "w").write(build())
```

```python
import os
import struct
import sys
from asmdsl import *

KNAME = "standalone__window_attn_swin_v2__vision_kernel"
NWG = 243
XBYTES = 378 * 378 * 96 * 2
LOG2E = 1.4426950408889634
STAMPS = int(os.environ.get("STAMPS", "0"))
PRIO = int(os.environ.get("PRIO", "1"))


def f32(x):
    return "0x%08x" % struct.unpack("<I", struct.pack("<f", x))[0]


RAW = 0
OB0 = 0
OBD = 12288
OBG = 24576
TAB = 55296
TABH = 704
WOF = 58368
XB0 = 76800
XBD = 9216
XBG = 18432
E3 = 113664
E3W = 1920
EST = 320
DUM = 129024
OFFS = 130944
SYNC = 135040
LDS_BYTES = 135104
DBGL = 135104

sDB = 3
sX, sOUT, sW = 4, 8, 12
sH, sWY, sWX0, sI = 16, 17, 18, 19
sXOFF, sSOFF, sT, sT1 = 20, 21, 22, 23
sEPSQ, sEPSL = 24, 25
sM33, sM1 = 26, 28
sSLOW, sTAU, sDOB, sDXB = 30, 31, 32, 33
sFY2, sFX5 = 34, 35
sXB, sO64, sT2, sT3, sTILE, sPAR = 36, 37, 38, 39, 40, 41
sEX = 42
sWV, sGR, sOFFS, sOBG = 74, 75, 76, 77
sCNT = 78
sMK = 44
sKA = 52
sOUTP = 68
sLS = 70
sSTAMP = 72
NSGPR = 96 if STAMPS else 80

WA = 0
WV = 36
CB = 60
CX = 96
vXADDR, vOW64, vOW32, vE3A, vPV, vSYNC = CX + 1, CX + 3, CX + 5, CX + 7, CX + 9, CX + 11
SEL = 112
QT = 114
KT = 130
VT = 146
PT = 162
T = 178
NVGPR = 256
XS = [T, T + 12]
ACC = [T + 24, T + 44]
NB = [T + 64, T + 66]
ND = [T + 68, T + 72]
SS = [T, T + 44]
OO = [T + 16, T + 60]

QPAD = 0xBE8AC140
KPAD = 0x3F804140


def wa(mt, ks):
    return WA + (mt * 3 + ks) * 4


def wv(nt, ks):
    return WV + (nt * 3 + ks) * 4


def lmask(f):
    return sum(1 << l for l in range(64) if f(l & 15, l >> 4))


def set_exec(b, m):
    lo, hi = m & 0xffffffff, m >> 32
    b.add(I(f"s_mov_b32 exec_lo, {lo:#x}", "salu", [], ["exec"]))
    b.add(I(f"s_mov_b32 exec_hi, {hi:#x}", "salu", [], ["exec"]))


def mul2(b, d, sc):
    b.valu("v_mul_f32", vr(d), vr(sc), vr(d))
    b.valu("v_mul_f32", vr(d + 1), vr(sc), vr(d + 1))


def cvt(b, d, lo, hi):
    b.valu("v_cvt_pk_bf16_f32", vr(d), lo if isinstance(lo, str) else vr(lo), hi if isinstance(hi, str) else vr(hi))


def mov(b, d, s):
    b.valu("v_mov_b32", vr(d), s if isinstance(s, str) else vr(s))


def gload(b, op, dst, n, voff, sbase, off=0, rmw=False):
    text = f"{op} {vr(dst, n)}, {vr(voff)}, {sr(sbase, 2)}" + (f" offset:{off}" if off else "")
    return b.add(I(text, "vml", V(voff) + S(sbase, 2) + (V(dst, n) if rmw else []), V(dst, n), mem=[("vmem", "w")]))


def stamp(b, t0, t1, real=False, lvl=1):
    if STAMPS < lvl:
        return
    b.fence()
    b.wait("lgkmcnt(0)")
    b.raw(("s_memrealtime " if real else "s_memtime ") + sr(sSTAMP, 2), "smem", [], S(sSTAMP, 2))
    b.wait("lgkmcnt(0)")
    mov(b, t0, sr(sSTAMP))
    mov(b, t1, sr(sDB))
    b.dsw("ds_write_b32", t1, t0, 1, 0)
    b.salu("s_add_u32", sr(sDB), sr(sDB), "4")
    b.fence()


def lstamp(b, k):
    if STAMPS:
        b.add(I(f"s_memtime {sr(80 + 2 * k, 2)}", "other", [], S(80 + 2 * k, 2)))


def lflush(b, n, t0, t1):
    if STAMPS:
        b.wait("lgkmcnt(0)")
        for k in range(n):
            mov(b, t0, sr(80 + 2 * k))
            mov(b, t1, sr(sDB))
            b.dsw("ds_write_b32", t1, t0, 1, 0)
            b.salu("s_add_u32", sr(sDB), sr(sDB), "4")
        b.fence()


def proj_tile(b, xs, a, nb, nd, qd, kd, vd0, vd1):
    for ks in range(3):
        for mt in range(3):
            b.mfma(a + 4 * mt, wa(mt, ks), xs + 4 * ks, "0" if ks == 0 else a + 4 * mt)
        for nt in range(2):
            b.mfma(a + 12 + 4 * nt, xs + 4 * ks, wv(nt, ks), "0" if ks == 0 else a + 12 + 4 * nt)
    for base, regs in ((nd + 2, (4, 6, 10)), (nd, (0, 2, 8))):
        for k, r in enumerate(regs):
            for u in range(2):
                if k == 0:
                    b.valu("v_fma_f32", vr(base + u), vr(a + r + u), vr(a + r + u), sr(sEPSQ))
                else:
                    b.valu("v_fmac_f32", vr(base + u), vr(a + r + u), vr(a + r + u), rmw=True)
    cvt(b, nb, nd, nd + 1)
    cvt(b, nb + 1, nd + 2, nd + 3)
    b.mfma(nd, SEL, nb, "0", shape="16x16x16")
    b.valu("v_rsq_f32", vr(nd + 2), vr(nd + 2))
    b.valu("v_rsq_f32", vr(nd), vr(nd))
    b.valu("v_mul_f32", vr(nd), sr(sTAU), vr(nd))
    for k, r in enumerate((4, 6, 10)):
        mul2(b, a + r, nd + 2)
        cvt(b, kd + k, a + r, a + r + 1)
    for k, r in enumerate((0, 2, 8)):
        mul2(b, a + r, nd)
        cvt(b, qd + k, a + r, a + r + 1)
    if vd0 is not None:
        cvt(b, vd0, a + 12, a + 13)
        cvt(b, vd0 + 1, a + 14, a + 15)
        g = Block()
        g.smov("exec", sr(sM33, 2))
        cvt(g, vd1, a + 16, a + 17)
        cvt(g, vd1 + 1, a + 18, a + 19)
        g.smov("exec", "-1")
        gi = b.group(g)
        gi.rd += V(vd1, 2)


def pv_and_out(b, p, o, off, masked):
    b.mfma(o + 4, VT + 8, p, "0")
    b.mfma(o, VT + 0, p, "0")
    b.mfma(o + 4, VT + 12, p + 4, o + 4)
    b.mfma(o, VT + 4, p + 4, o)
    b.valu("v_rcp_f32", vr(o + 6), vr(o + 6))
    mul2(b, o + 4, o + 6)
    cvt(b, o + 4, o + 4, o + 5)
    mul2(b, o, o + 6)
    mul2(b, o + 2, o + 6)
    cvt(b, o, o, o + 1)
    cvt(b, o + 1, o + 2, o + 3)
    if masked:
        g = Block()
        g.smov("exec", sr(sEX, 2))
        g.dsw("ds_write_b64", vOW64, o, 2, off)
        g.dsw("ds_write_b32", vOW32, o + 4, 1, off)
        g.smov("exec", "-1")
        b.group(g)
    else:
        b.dsw("ds_write_b32", vOW32, o + 4, 1, off)
        b.dsw("ds_write_b64", vOW64, o, 2, off)


def xmax(b, m, t, op):
    mov(b, t, m)
    b.valu(op, vr(t), vr(m))
    b.valu("v_max_f32", vr(m), vr(m), vr(t))


def phase1(slow):
    b = Block()
    for ks in range(3):
        b.dsr("ds_read_b128", XS[0] + 4 * ks, 4, vXADDR, 1024 * ks)
    for t in range(3):
        s = t % 2
        if t + 1 < 3:
            for ks in range(3):
                b.dsr("ds_read_b128", XS[(t + 1) % 2] + 4 * ks, 4, vXADDR, ((t + 1) * 3 + ks) * 1024)
        if t == 0:
            b.dsr("ds_read_b128", QT + 12, 4, vE3A, 0)
            b.dsr("ds_read_b128", KT + 12, 4, vE3A, 64)
            b.dsr("ds_read_u16", VT + 6, 1, vPV, 256)
            b.dsr("ds_read_u16", VT + 14, 1, vPV, 264)
        vd = (0, 2, 4)[t]
        proj_tile(b, XS[s], ACC[s], NB[s], ND[s], QT + 4 * t, KT + 4 * t, VT + vd, VT + 8 + vd)
    s = SS[0]
    for kt in (3, 0, 1, 2):
        b.mfma(s + 4 * kt, QT + 12, KT + 4 * kt, CX + 6 + 2 * kt)
    if slow:
        m, t = s + 2, s + 3
        b.valu("v_max3_f32", vr(m), vr(s), vr(s + 4), vr(s + 8))
        b.valu("v_max_f32", vr(m), vr(m), vr(s + 12))
        for ror in (8, 4, 2, 1):
            b.valu("v_max_f32_dpp", vr(t), vr(m), vr(m), mod=f"row_ror:{ror} row_mask:0xf bank_mask:0xf")
            mov(b, m, t)
        for kt in range(4):
            b.valu("v_sub_f32", vr(s + 4 * kt), vr(s + 4 * kt), vr(m))
    for kt in (3, 0, 1, 2):
        b.valu("v_exp_f32", vr(s + 4 * kt), vr(s + 4 * kt))
    cvt(b, s + 1, s, s + 4)
    cvt(b, s + 5, s + 8, s + 12)
    b.dsw("ds_write_b16", vPV, s + 1, 1, 128, mem=["p48"])
    b.dsw("ds_write_b16_d16_hi", vPV, s + 1, 1, 136, mem=["p48"])
    b.dsw("ds_write_b16", vPV, s + 5, 1, 192, mem=["p48"])
    b.dsw("ds_write_b16_d16_hi", vPV, s + 5, 1, 200, mem=["p48"])
    p48 = PT + 8
    b.dsr("ds_read_b128", p48, 4, vE3A, 128, mem=["p48"])
    b.dsr("ds_read_b128", p48 + 4, 4, vE3A, 192, mem=["p48"])
    for qt in range(3):
        s = SS[(qt + 1) % 2]
        p = PT + 8 * (qt % 2)
        o = OO[qt % 2]
        b.mfma(s + 12, KT + 12, QT + 4 * qt, CX + 2 * qt)
        for kt in range(3):
            b.mfma(s + 4 * kt, KT + 4 * kt, QT + 4 * qt, CB + (qt * 3 + kt) * 4)
        if slow:
            m, t = s + 13, s + 14
            b.valu("v_max3_f32", vr(m), vr(s), vr(s + 1), vr(s + 2))
            for k in range(3, 13, 2):
                b.valu("v_max3_f32", vr(m), vr(m), vr(s + k), vr(s + k + 1))
            xmax(b, m, t, "v_permlane32_swap_b32")
            xmax(b, m, t, "v_permlane16_swap_b32")
            for k in range(13):
                b.valu("v_sub_f32", vr(s + k), vr(s + k), vr(m))
        b.valu("v_exp_f32", vr(s + 12), vr(s + 12))
        cvt(b, p + 6, s + 12, "0")
        for k in range(6):
            b.valu("v_exp_f32", vr(s + 2 * k), vr(s + 2 * k))
            b.valu("v_exp_f32", vr(s + 2 * k + 1), vr(s + 2 * k + 1))
            cvt(b, p + k, s + 2 * k, s + 2 * k + 1)
        pv_and_out(b, p, o, qt * 3072, False)
        if qt == 0:
            pv_and_out(b, p48, OO[1], 3 * 3072, True)
    return b


vOR, vWO = T + 76, T + 77


def phase2():
    b = Block()
    OOP, Y, WST = T, T + 12, T + 36
    vOF = PT
    for ks in range(3):
        b.dsr("ds_read_b128", OOP + 4 * ks, 4, vOR, 16 * ks)
    b.dsr("ds_read_b32", vOF, 1, PT + 1, 0)
    k = 0
    for mt in range(6):
        for ks in range(3):
            w = WST + 4 * (k % 10)
            b.dsr("ds_read_b128", w, 4, vWO, (mt * 3 + ks) * 1024)
            b.mfma(Y + 4 * mt, w, OOP + 4 * ks, "0" if ks == 0 else Y + 4 * mt)
            k += 1
    a0 = PT + 2
    for k in range(6):
        for c in range(4):
            r = Y + 4 * k + c
            if k == 0:
                b.valu("v_fma_f32", vr(a0 + c), vr(r), vr(r), sr(sEPSL))
            else:
                b.valu("v_fmac_f32", vr(a0 + c), vr(r), vr(r), rmw=True)
    cvt(b, a0, a0, a0 + 1)
    cvt(b, a0 + 1, a0 + 2, a0 + 3)
    D = PT + 8
    b.mfma(D, SEL, a0, "0", shape="16x16x16")
    b.valu("v_rsq_f32", vr(D + 1), vr(D + 1))
    b.valu("v_mul_f32", vr(D + 1), f32(96.0 ** 0.5), vr(D + 1))
    for p in range(3):
        y = Y + 8 * p
        for k in range(4):
            mul2(b, y + 2 * k, D + 1)
            cvt(b, y + k, y + 2 * k, y + 2 * k + 1)
        b.bstore(y, 4, vOF, sOUT, sr(sSOFF), 64 * p)
    return b


def lane_ngl(b, vl, vn, vg):
    b.valu("v_mbcnt_lo_u32_b32", vr(vl), "-1", "0")
    b.valu("v_mbcnt_hi_u32_b32", vr(vl), "-1", vr(vl))
    b.valu("v_and_b32", vr(vn), "15", vr(vl))
    b.valu("v_lshrrev_b32", vr(vg), "4", vr(vl))


def set_pads(b, vn, vg, tmp, sfx, x3):
    ty, tx, r, cq, ck = tmp, tmp + 1, tmp + 2, tmp + 3, tmp + 4
    mov(b, cq, "%#x" % QPAD)
    mov(b, ck, "%#x" % KPAD)
    for t in range(3):
        b.valu("v_add_u32", vr(tx), str(16 * t), vr(vn))
        b.valu("v_mul_u32_u24", vr(ty), "37", vr(tx))
        b.valu("v_lshrrev_b32", vr(ty), "8", vr(ty))
        b.valu("v_mul_u32_u24", vr(r), "7", vr(ty))
        b.valu("v_sub_u32", vr(tx), vr(tx), vr(r))
        b.valu("v_lshrrev_b32", vr(ty), "2", vr(ty))
        b.valu("v_lshrrev_b32", vr(tx), "2", vr(tx))
        b.valu("v_mul_u32_u24", vr(r), sr(sFY2), vr(ty))
        b.valu("v_mad_u32_u24", vr(r), vr(tx), sfx, vr(r))
        b.vcmp("v_cmp_eq_u32", sr(sMK, 2), vr(r), vr(vg))
        b.valu("v_cndmask_b32_e64", vr(QT + 4 * t + 3), "0", vr(cq), sr(sMK, 2))
        b.valu("v_cndmask_b32_e64", vr(KT + 4 * t + 3), vr(ck), "0", sr(sMK, 2))
    if x3:
        b.vcmp("v_cmp_eq_u32", sr(sMK, 2), "5", vr(vn))
        mov(b, tx, sr(sFX5))
        b.valu("v_cndmask_b32_e64", vr(r), "0", vr(tx), sr(sMK, 2))
        b.valu("v_add_u32", vr(r), sr(sFY2), vr(r))
        b.vcmp("v_cmp_eq_u32", sr(sMK, 2), vr(r), vr(vg))
        b.valu("v_cndmask_b32_e64", vr(QT + 15), "0", vr(cq), sr(sMK, 2))
        b.valu("v_cndmask_b32_e64", vr(KT + 15), vr(ck), "0", sr(sMK, 2))


def srd(b, d, lo, nbytes):
    b.smov(sr(d), sr(lo))
    b.salu("s_and_b32", sr(d + 1), sr(lo + 1), "0xffff")
    b.smov(sr(d + 2), "%#x" % nbytes)
    b.smov(sr(d + 3), "0x00020000")


def setup(tail):
    b = Block()
    vL, vN, vG, vL16 = T + 76, T + 77, PT, PT + 1
    jp, gp, g16 = PT + 2, PT + 3, PT + 4
    b.scmp("s_cmp_ge_u32", "s2", str(NWG))
    b.branch("s_cbranch_scc1", "L_end")
    b.sload(sKA, 16, 0, 0)
    b.sload(sOUTP, 2, 0, 72)
    b.valu("v_lshrrev_b32", vr(1), "6", "v0")
    b.valu("v_and_b32", vr(vL), "63", "v0")
    b.readfirstlane(sr(sWV), vr(1))
    b.salu("s_and_b32", sr(sH), sr(sWV), "3")
    b.salu("s_lshr_b32", sr(sGR), sr(sWV), "2")
    b.salu("s_lshl_b32", "s2", "s2", "1")
    b.salu("s_add_u32", "s2", "s2", sr(sGR))
    if STAMPS:
        b.salu("s_lshl_b32", sr(sDB), sr(sWV), "7")
        b.salu("s_add_u32", sr(sDB), sr(sDB), str(DBGL))
        stamp(b, 58, 59)
        stamp(b, 58, 59, real=True)
    b.valu("v_and_b32", vr(vN), "15", vr(vL))
    b.valu("v_lshrrev_b32", vr(vG), "4", vr(vL))
    b.valu("v_lshlrev_b32", vr(vL16), "4", vr(vL))
    b.valu("v_and_b32", vr(jp), "3", vr(vL))
    b.valu("v_lshrrev_b32", vr(gp), "2", vr(vN))
    b.valu("v_and_b32", vr(g16), "48", vr(vL))
    b.salu("s_mul_i32", sr(sWY), "s2", "7282", scc=False)
    b.salu("s_lshr_b32", sr(sWY), sr(sWY), "16")
    b.salu("s_mul_i32", sr(sT), sr(sWY), "9", scc=False)
    b.salu("s_sub_u32", sr(sWX0), "s2", sr(sT))
    b.salu("s_mul_i32", sr(sWX0), sr(sWX0), "42", scc=False)
    b.salu("s_mul_i32", sr(sWY), sr(sWY), "7", scc=False)
    tok, ty, tx, row, cb_, v3, vA, vB = 2, 3, 4, 5, 6, 7, 8, 9
    b.salu("s_lshl_b32", sr(sT), sr(sH), "4")
    b.valu("v_add_u32", vr(tok), sr(sT), vr(vN))
    b.valu("v_mul_u32_u24", vr(ty), "37", vr(tok))
    b.valu("v_lshrrev_b32", vr(ty), "8", vr(ty))
    b.valu("v_mul_u32_u24", vr(tx), "7", vr(ty))
    b.valu("v_sub_u32", vr(tx), vr(tok), vr(tx))
    b.salu("s_add_u32", sr(sT), sr(sWY), "3")
    b.valu("v_add_u32", vr(row), sr(sT), vr(ty))
    b.valu("v_subrev_u32", vr(ty), "378", vr(row))
    b.valu("v_min_u32", vr(row), vr(row), vr(ty))
    b.valu("v_mul_u32_u24", vr(row), "378", vr(row))
    b.valu("v_add_u32", vr(vA), vr(row), vr(tx))
    b.valu("v_mul_u32_u24", vr(vA), "192", vr(vA))
    b.valu("v_add_u32", vr(vA), vr(vA), vr(g16))
    b.salu("s_add_u32", sr(sXOFF), sr(sWX0), "3")
    b.salu("s_mul_i32", sr(sXOFF), sr(sXOFF), "192", scc=False)
    b.salu("s_add_u32", sr(sT), sr(sWY), "9")
    b.salu("s_sub_u32", sr(sT1), sr(sT), "378")
    b.salu("s_min_u32", sr(sT), sr(sT), sr(sT1))
    b.salu("s_mul_i32", sr(sT), sr(sT), "378", scc=False)
    b.salu("s_add_u32", sr(sT1), sr(sWX0), "9")
    b.valu("v_mul_u32_u24", vr(cb_), "7", vr(vN))
    b.valu("v_add_u32", vr(cb_), sr(sT1), vr(cb_))
    b.valu("v_subrev_u32", vr(ty), "378", vr(cb_))
    b.valu("v_min_u32", vr(cb_), vr(cb_), vr(ty))
    b.valu("v_add_u32", vr(v3), sr(sT), vr(cb_))
    b.valu("v_mul_u32_u24", vr(v3), "192", vr(v3))
    b.valu("v_add_u32", vr(v3), vr(v3), vr(g16))
    set_exec(b, lmask(lambda n, g: n >= 6))
    mov(b, v3, "0x40000000")
    b.smov("exec", "-1")
    vRC, vA1o, vA2o = 10, 11, 12
    b.valu("v_min_u32", vr(vRC), "168", "v0")
    b.valu("v_lshlrev_b32", vr(vRC), "2", vr(vRC))
    b.valu("v_lshlrev_b32", vr(vA1o), "1", vr(vN))
    b.valu("v_lshlrev_b32", vr(vA2o), "1", vr(g16))
    b.valu("v_lshl_add_u32", vr(vA2o), vr(jp), "1", vr(vA2o))
    WOR = 24
    s_, hh, w_, d1, d2 = 18, 19, 20, 21, 22
    vWR = [23, 15]
    b.salu("s_lshl_b32", sr(sT), sr(sH), "3")
    b.salu("s_sub_u32", sr(sT), sr(sT), "8")
    for half in range(2):
        if half:
            b.salu("s_add_u32", sr(sT), sr(sT), "4")
        b.valu("v_add_u32", vr(s_), sr(sT), vr(jp))
        b.valu("v_mul_u32_u24", vr(hh), "43", vr(s_))
        b.valu("v_lshrrev_b32", vr(hh), "8", vr(hh))
        b.valu("v_mul_u32_u24", vr(w_), "6", vr(hh))
        b.valu("v_sub_u32", vr(w_), vr(s_), vr(w_))
        b.valu("v_and_b32", vr(d1), "1", vr(hh))
        b.valu("v_lshl_add_u32", vr(w_), vr(d1), "2", vr(w_))
        b.valu("v_subrev_u32", vr(d1), "6", vr(w_))
        b.valu("v_min_u32", vr(w_), vr(w_), vr(d1))
        b.vcmp("v_cmp_gt_u32", sr(sMK, 2), "4", vr(w_))
        b.valu("v_lshl_add_u32", vr(d1), vr(gp), "2", vr(w_))
        b.valu("v_lshl_add_u32", vr(d2), vr(gp), "1", vr(w_))
        b.valu("v_add_u32", vr(d2), "12", vr(d2))
        b.valu("v_cndmask_b32_e64", vr(d1), vr(d2), vr(d1), sr(sMK, 2))
        b.valu("v_mad_u32_u24", vr(d1), vr(hh), "24", vr(d1))
        b.valu("v_mul_u32_u24", vr(d1), "192", vr(d1))
        b.valu("v_add_u32", vr(vWR[half]), vr(d1), vr(g16))
    b.salu("s_lshl_b32", sr(sT), sr(sWV), "10")
    b.smov("m0", sr(sT))
    lstamp(b, 0)
    b.wait("lgkmcnt(0)")
    lstamp(b, 1)
    srd(b, sW, sKA + 2, 55296)
    RCV, A1, A2 = 13, 14, 16
    b.scmp("s_cmp_ge_u32", sr(sWV), "3")
    b.branch("s_cbranch_scc1", "L_skipsm")
    gload(b, "global_load_dword", RCV, 1, vRC, sKA + 12)
    U = 18
    UL = [18, 19, 20, 21, 22, 1]
    gload(b, "global_load_ushort", UL[0], 1, vA1o, sKA + 8)
    gload(b, "global_load_ushort", UL[1], 1, vA1o, sKA + 8, 32)
    for k in range(4):
        gload(b, "global_load_ushort", UL[2 + k], 1, vA2o, sKA + 10, 8 * k)
    b.label("L_skipsm")
    b.sload(sLS, 2, sKA + 6, 0)
    b.scmp("s_cmp_lt_u32", sr(sWV), "5")
    b.branch("s_cbranch_scc1", "L_skipwo")
    for half in range(2):
        for p in range(3):
            gload(b, "global_load_dwordx4", WOR + (half * 3 + p) * 4, 4, vWR[half], sKA + 4, 64 * p)
    b.label("L_skipwo")
    fill = Block()
    srd(fill, sX, sKA + 0, XBYTES)
    srd(fill, sOUT, sOUTP, XBYTES)
    fill.smov(sr(sEPSQ), f32(1e-12 / 8))
    fill.smov(sr(sEPSL), f32(1e-5 * 96 / 16))
    fill.smov(sr(sM33), "0x33333333")
    fill.smov(sr(sM33 + 1), "0x33333333")
    fill.smov(sr(sM1), "0x00010001")
    fill.smov(sr(sM1 + 1), "0x00010001")
    fill.salu("s_mul_i32", sr(sXB), sr(sGR), str(XBG), scc=False)
    fill.salu("s_add_u32", sr(sXB), sr(sXB), str(XB0))
    fill.salu("s_lshl_b32", sr(sOFFS), sr(sGR), "11")
    fill.salu("s_add_u32", sr(sOFFS), sr(sOFFS), str(OFFS))
    fill.salu("s_mul_i32", sr(sOBG), sr(sGR), str(OBG), scc=False)
    fl = list(fill.ins)
    for k in range(6):
        b.dma(vL16, sW, "m0")
        b.salu("s_add_u32", "m0", "m0", "8192")
        b.add(fl.pop(0))
        b.add(fl.pop(0))
    b.ins.extend(fl)
    b.scmp("s_cmp_ge_u32", sr(sWV), "6")
    b.branch("s_cbranch_scc1", "L_skipw")
    b.dma(vL16, sW, "m0")
    b.label("L_skipw")
    for ks in range(3):
        b.bload(XS[0] + 4 * ks, 4, v3, sX, "0", 64 * ks)
    b.scmp("s_cmp_eq_u32", sr(sH), "3")
    b.branch("s_cbranch_scc1", "L_skipx0")
    b.salu("s_mul_i32", sr(sT), sr(sH), "3072", scc=False)
    b.salu("s_add_u32", "m0", sr(sT), sr(sXB))
    b.smov(sr(sT1), sr(sXOFF))
    for ks in range(3):
        b.dma(vA, sX, sr(sT1))
        if ks < 2:
            b.salu("s_add_u32", "m0", "m0", "1024")
            b.salu("s_add_u32", sr(sT1), sr(sT1), "64")
    b.label("L_skipx0")
    lstamp(b, 2)
    lstamp(b, 3)
    b.salu("s_add_u32", sr(sT), sr(sWX0), "38")
    b.valu("v_add_u32", vr(cb_), sr(sT), vr(tx))
    b.valu("v_subrev_u32", vr(ty), "378", vr(cb_))
    b.valu("v_min_u32", vr(cb_), vr(cb_), vr(ty))
    b.valu("v_add_u32", vr(vB), vr(row), vr(cb_))
    b.valu("v_mul_u32_u24", vr(vB), "192", vr(vB))
    b.valu("v_add_u32", vr(vB), vr(vB), vr(g16))
    va = 2
    b.salu("s_lshl_b32", sr(sT), sr(sH), "8")
    b.salu("s_add_u32", sr(sT), sr(sT), sr(sOFFS))
    b.valu("v_lshl_add_u32", vr(va), vr(vL), "2", sr(sT))
    b.scmp("s_cmp_eq_u32", sr(sH), "3")
    b.salu("s_cselect_b64", sr(sMK, 2), "-1", "0", scc=False, rscc=True)
    b.valu("v_cndmask_b32_e64", vr(vA), vr(vA), vr(v3), sr(sMK, 2))
    b.dsw("ds_write_b32", va, vB, 1, 1024)
    b.dsw("ds_write_b32", va, vA, 1, 0)
    one2, HV = 3, PT + 5
    F, ONES = 48, 54
    E2, E3m = VT, PT + 8
    A1K, A2K = ACC[0], ACC[0] + 8
    Z = ACC[0] + 16
    zero_list = ([SEL, SEL + 1] + [VT + k for k in range(7, 16) if k != 14] + [PT + 7, PT + 15] + [QT + 4 * t + 3 for t in range(4)]
                 + [KT + 4 * t + 3 for t in range(4)] + list(range(F, F + 6)) + list(range(E2, E2 + 4)) + list(range(E3m, E3m + 4))
                 + list(range(A1K, A1K + 20)))
    for r in zero_list:
        mov(b, r, "0")
    b.scmp("s_cmp_lg_u32", sr(sWV), "3")
    b.branch("s_cbranch_scc1", "L_nodum")
    b.valu("v_add_u32", vr(va), str(DUM), vr(vL16))
    b.dsw("ds_write_b128", va, Z, 4, 0)
    b.dsw("ds_write_b128", va, Z, 4, 1920 - 1024)
    mov(b, va, str(SYNC))
    b.dsw("ds_write_b128", va, Z, 4, 0)
    b.dsw("ds_write_b128", va, Z, 4, 16)
    b.label("L_nodum")
    mov(b, one2, "0x3f803f80")
    for k in range(4):
        mov(b, ONES + k, one2)
    mov(b, HV, "0x3f80")
    set_exec(b, lmask(lambda n, g: n & 1))
    mov(b, HV, "0x3f800000")
    set_exec(b, lmask(lambda n, g: n % 4 in (0, 1)))
    mov(b, SEL, one2)
    set_exec(b, lmask(lambda n, g: n % 4 in (1, 2)))
    mov(b, SEL + 1, one2)
    set_exec(b, lmask(lambda n, g: n % 4 == 2))
    for k in range(8, 14):
        mov(b, VT + k, one2)
    set_exec(b, lmask(lambda n, g: (n >> 1) == 2 * g))
    mov(b, F + 2, HV)
    set_exec(b, lmask(lambda n, g: (n >> 1) == 2 * g + 1))
    mov(b, F + 3, HV)
    for r in range(4):
        set_exec(b, lmask(lambda n, g: g == ((n & 3) >> 1) and (n >> 2) == r))
        mov(b, E2 + r, HV)
        set_exec(b, lmask(lambda n, g: g == 2 and (n & 3) < 2 and (n >> 2) == r))
        mov(b, E3m + r, HV)
    b.smov("exec", "-1")
    pat = 4
    vV3W, vQ3W, vTR, vAP = PT + 6, PT + 12, PT + 13, PT + 14
    b.salu("s_mul_i32", sr(sT), sr(sWV), str(E3W), scc=False)
    b.salu("s_add_u32", sr(sT), sr(sT), str(E3))
    b.valu("v_add_u32", vr(vE3A), sr(sT), vr(g16))
    b.valu("v_lshlrev_b32", vr(pat), "4", vr(gp))
    b.valu("v_lshl_add_u32", vr(pat), vr(jp), "1", vr(pat))
    b.valu("v_add_u32", vr(vPV), str(DUM), vr(pat))
    set_exec(b, 0xffff)
    b.valu("v_add_u32", vr(vPV), sr(sT), vr(pat))
    b.smov("exec", "-1")
    b.valu("v_mul_u32_u24", vr(vV3W), str(4 * EST), vr(vG))
    b.valu("v_add3_u32", vr(vV3W), vr(vV3W), vr(pat), sr(sT))
    b.valu("v_mul_u32_u24", vr(vQ3W), str(EST), vr(vN))
    b.valu("v_add_u32", vr(vQ3W), vr(vQ3W), vr(vE3A))
    b.valu("v_add_u32", vr(vXADDR), sr(sXB), vr(vL16))
    b.salu("s_lshl_b32", sr(sT), sr(sGR), "4")
    b.salu("s_add_u32", sr(sT), sr(sT), str(SYNC))
    mov(b, vSYNC, sr(sT))
    b.valu("v_mul_u32_u24", vr(vOW64), "48", vr(vL))
    b.salu("s_mul_i32", sr(sT), sr(sH), "12", scc=False)
    b.salu("s_and_b32", sr(sT1), sr(sH), "1")
    b.salu("s_lshl_b32", sr(sT1), sr(sT1), "2")
    b.salu("s_add_u32", sr(sO64), sr(sT), sr(sT1))
    b.salu("s_lshl_b32", sr(sT1), sr(sT1), "1")
    b.salu("s_add_u32", sr(sT), sr(sT), str(OB0 + 8))
    b.salu("s_add_u32", sr(sT), sr(sT), sr(sOBG))
    b.salu("s_sub_u32", sr(sT), sr(sT), sr(sT1))
    b.valu("v_add_u32", vr(vOW32), sr(sT), vr(vOW64))
    b.salu("s_add_u32", sr(sT), sr(sO64), sr(sOBG))
    b.valu("v_add_u32", vr(vOW64), sr(sT), vr(vOW64))
    b.salu("s_mul_i32", sr(sT), sr(sH), "48", scc=False)
    b.valu("v_lshl_add_u32", vr(vTR), vr(vG), "3", vr(gp))
    b.valu("v_mul_u32_u24", vr(vTR), "576", vr(vTR))
    b.valu("v_lshl_add_u32", vr(vTR), vr(jp), "3", vr(vTR))
    b.valu("v_add_u32", vr(vTR), sr(sT), vr(vTR))
    b.valu("v_lshl_add_u32", vr(vAP), vr(gp), "3", vr(jp))
    b.valu("v_mul_u32_u24", vr(vAP), "576", vr(vAP))
    b.valu("v_min_u32", vr(5), "2", vr(vG))
    b.valu("v_mul_u32_u24", vr(5), "192", vr(5))
    b.salu("s_add_u32", sr(sT), sr(sT), "32")
    b.valu("v_add3_u32", vr(vAP), vr(vAP), vr(5), sr(sT))
    b.scmp("s_cmp_eq_u32", sr(sWY), str(53 * 7))
    b.salu("s_cselect_b32", sr(sFY2), "2", "0", scc=False, rscc=True)
    b.scmp("s_cmp_eq_u32", sr(sWX0), str(48 * 7))
    b.salu("s_cselect_b32", sr(sFX5), "1", "0", scc=False, rscc=True)
    b.salu("s_or_b32", sr(sT), sr(sFY2), sr(sFX5))
    b.branch("s_cbranch_scc1", "L_pads0")
    b.label("L_pads0r")
    tail.label("L_pads0")
    set_pads(tail, vN, vG, 5, "0", True)
    tail.branch("s_branch", "L_pads0r")
    b.wait("lgkmcnt(0)")
    b.salu("s_lshl_b32", sr(sT), sr(sH), "4")
    b.salu("s_lshr_b64", sr(sLS, 2), sr(sLS, 2), sr(sT))
    b.salu("s_lshl_b32", sr(sT), sr(sLS), "16")
    tv = 5
    mov(b, tv, sr(sT))
    b.valu("v_min_f32", vr(tv), f32(4.59375), vr(tv))
    b.valu("v_max_f32", vr(tv), f32(-100.0), vr(tv))
    b.valu("v_mul_f32", vr(tv), f32(LOG2E), vr(tv))
    b.valu("v_exp_f32", vr(tv), vr(tv))
    FQ, KY, g148 = 6, XS[1], 9
    b.salu("s_mul_i32", sr(sT2), sr(sH), str(TABH), scc=False)
    b.salu("s_add_u32", sr(sT2), sr(sT2), str(TAB))
    cvt(b, tv, tv, tv)
    b.valu("v_mul_u32_u24", vr(g148), "148", vr(vG))
    b.valu("v_lshlrev_b32", vr(tv), "16", vr(tv))
    for qt in range(3):
        b.valu("v_add_u32", vr(FQ + qt), str(16 * qt), vr(vN))
        if qt == 0:
            b.readfirstlane(sr(sSLOW), vr(tv))
            b.valu("v_mul_f32", vr(tv), f32(LOG2E), vr(tv))
        b.valu("v_mul_u32_u24", vr(10), "37", vr(FQ + qt))
        if qt == 0:
            b.readfirstlane(sr(sTAU), vr(tv))
        b.valu("v_lshrrev_b32", vr(10), "8", vr(10))
        b.valu("v_lshl_add_u32", vr(FQ + qt), vr(FQ + qt), "2", sr(sT2))
        b.valu("v_mad_u32_u24", vr(FQ + qt), vr(10), "24", vr(FQ + qt))
    b.scmp("s_cmp_gt_u32", sr(sSLOW), f32(19.5))
    b.salu("s_cselect_b32", sr(sSLOW), "1", "0", scc=False, rscc=True)
    for kt in range(3):
        for j in range(4):
            r = KY + kt * 4 + j
            b.valu("v_add_u32", vr(r), str(37 * (16 * kt + j)), vr(g148))
            b.valu("v_lshrrev_b32", vr(r), "8", vr(r))
    b.scmp("s_cmp_ge_u32", sr(sWV), "3")
    b.branch("s_cbranch_scc1", "L_skiptab")
    b.wait("vmcnt(13)")
    lstamp(b, 3)
    b.valu("v_lshl_or_b32", vr(A1), vr(UL[1]), "16", vr(UL[0]))
    b.valu("v_lshl_or_b32", vr(A2), vr(UL[3]), "16", vr(UL[2]))
    b.valu("v_lshl_or_b32", vr(A2 + 1), vr(UL[5]), "16", vr(UL[4]))
    for k in range(4):
        set_exec(b, lmask(lambda n, g: g == k))
        mov(b, A1K + 2 * k, A1)
        set_exec(b, lmask(lambda n, g: (n >> 2) == k))
        mov(b, A2K + 2 * k, A2)
        mov(b, A2K + 2 * k + 1, A2 + 1)
    b.smov("exec", "-1")
    c = Block()
    HD, OUT4 = T + 44, T + 60
    RB = 10
    mov(c, RB, RCV)
    mov(c, RB + 1, "0")
    for k in range(4):
        c.mfma(HD + 4 * k, A1K + 2 * k, RB, "0", shape="16x16x16")
    for k in range(4):
        h_ = HD + 4 * k
        cvt(c, h_, h_, h_ + 1)
        cvt(c, h_ + 1, h_ + 2, h_ + 3)
        c.valu("v_pk_max_i16", vr(h_), vr(h_), "0")
        c.valu("v_pk_max_i16", vr(h_ + 1), vr(h_ + 1), "0")
        c.mfma(OUT4, A2K + 2 * k, h_, "0" if k == 0 else OUT4, shape="16x16x16")
    mov(c, 12, f32(-8.0 * LOG2E))
    mov(c, 11, f32(16.0 * LOG2E))
    for hh_ in range(4):
        o = OUT4 + hh_
        cvt(c, o, o, o)
        c.valu("v_lshlrev_b32", vr(o), "16", vr(o))
        c.valu("v_mul_f32", vr(o), f32(-LOG2E), vr(o))
        c.valu("v_exp_f32", vr(o), vr(o))
        c.valu("v_add_f32", vr(o), "1.0", vr(o))
        c.valu("v_rcp_f32", vr(o), vr(o))
        cvt(c, o, o, o)
        c.valu("v_lshlrev_b32", vr(o), "16", vr(o))
        c.valu("v_fma_f32", vr(o), vr(o), vr(11), vr(12))
    c.valu("v_min_u32", vr(RB), "175", "v0")
    c.valu("v_lshlrev_b32", vr(RB), "2", vr(RB))
    for hh_ in range(4):
        c.dsw("ds_write_b32", RB, OUT4 + hh_, 1, TAB + TABH * hh_)
    sch, _ = schedule(c.ins)
    b.ins.extend(sch)
    b.label("L_skiptab")
    WRES = T + 44
    b.scmp("s_cmp_lt_u32", sr(sWV), "5")
    b.branch("s_cbranch_scc1", "L_skipwo2")
    b.wait("vmcnt(9)")
    c = Block()
    DS_ = [ACC[0], ACC[0] + 4]
    DM = [ACC[0] + 8, ACC[0] + 12, ACC[0] + 16]
    for half in range(2):
        rows = WOR + half * 12
        ds_ = DS_[half]
        for p in range(3):
            c.mfma(ds_, rows + 4 * p, ONES, "0" if p == 0 else ds_)
        for k in range(4):
            c.valu("v_mul_f32", vr(ds_ + k), f32(-1.0 / 96.0), vr(ds_ + k))
    for half in range(2):
        rows = WOR + half * 12
        for mt in range(6):
            d = DM[mt % 3]
            c.mfma(d, rows + 4 * (mt // 2), F + (2 if mt % 2 == 0 else 0), DS_[half])
            cvt(c, WRES + 4 * mt + 2 * half, d, d + 1)
            cvt(c, WRES + 4 * mt + 2 * half + 1, d + 2, d + 3)
    c.salu("s_lshl_b32", sr(sT), sr(sH), "10")
    c.salu("s_add_u32", sr(sT), sr(sT), str(WOF - 1024))
    c.valu("v_add_u32", vr(10), sr(sT), vr(vL16))
    for mt in range(6):
        c.dsw("ds_write_b128", 10, WRES + 4 * mt, 4, mt * 3072)
    sch, _ = schedule(c.ins)
    b.ins.extend(sch)
    b.label("L_skipwo2")
    lstamp(b, 4)
    lflush(b, 5, 58, 59)
    b.raw("s_barrier", "barrier")
    c = Block()
    mov(c, 11, "-24")
    c.salu("s_lshl_b32", sr(sT), sr(sT2), "1")
    c.salu("s_add_u32", sr(sT), sr(sT), "672")
    for qt in range(3):
        mov(c, CX + 2 * qt, FQ + qt)
        c.dsr("ds_read_b32", CX + 2 * qt, 1, CX + 2 * qt, 0)
        c.valu("v_sub_u32", vr(CX + 6 + 2 * qt), sr(sT), vr(FQ + qt))
        c.dsr("ds_read_b32", CX + 6 + 2 * qt, 1, CX + 6 + 2 * qt, 0)
        c.valu("v_sub_u32", vr(FQ + qt), vr(FQ + qt), vr(g16))
    mov(c, CX + 12, sr(sT2))
    c.dsr("ds_read_b32", CX + 12, 1, CX + 12, 336)
    for qt in range(3):
        for kt in range(3):
            for j in range(4):
                r = CB + (qt * 3 + kt) * 4 + j
                c.valu("v_mad_i32_i24", vr(r), vr(KY + kt * 4 + j), vr(11), vr(FQ + qt))
                c.dsr("ds_read_b32", r, 1, r, 336 - 64 * kt - 4 * j)
    b.ins.extend(c.ins)
    stamp(b, 58, 59)
    b.wait("vmcnt(0)")
    b.fence()
    b.raw("s_barrier", "barrier")
    stamp(b, T + 72, T + 73)
    c = Block()
    for ks in range(3):
        for hf in range(2):
            ro = (32 * ks + 4 * hf) * 576
            ap = XS[1] + 4 * ((ks * 2 + hf) % 3)
            c.dsr("ds_read_b128", ap, 4, vAP, ro)
            c.dsr("ds_read_b64_tr_b16", wa(0, ks) + 2 * hf, 2, vTR, ro)
            c.dsr("ds_read_b64_tr_b16", wa(1, ks) + 2 * hf, 2, vTR, ro + 192)
            c.dsr("ds_read_b64_tr_b16", wv(0, ks) + 2 * hf, 2, vTR, ro + 384)
            d = ACC[0] + 8 * ((ks * 2 + hf) % 2)
            c.mfma(d, ap, E2, "0")
            c.mfma(d + 4, ap, E3m, "0")
            cvt(c, wa(2, ks) + 2 * hf, d, d + 1)
            cvt(c, wa(2, ks) + 2 * hf + 1, d + 2, d + 3)
            cvt(c, wv(1, ks) + 2 * hf, d + 4, d + 5)
            cvt(c, wv(1, ks) + 2 * hf + 1, d + 6, d + 7)
    proj_tile(c, XS[0], ACC[0], XS[1], ND[0], QT + 12, KT + 12, None, None)
    a = ACC[0]
    cvt(c, a + 12, a + 12, a + 13)
    cvt(c, a + 13, a + 14, a + 15)
    cvt(c, a + 16, a + 16, a + 17)
    cvt(c, a + 17, a + 18, a + 19)
    c.valu("v_or_b32", vr(a + 16), vr(a + 16), vr(VT + 8))
    c.valu("v_or_b32", vr(a + 17), vr(a + 17), vr(VT + 8))
    c.smov(sr(sI), "0")
    c.smov(sr(sDOB), str(OBD))
    c.smov(sr(sDXB), str(XBD))
    c.smov(sr(sCNT), "0")
    c.salu("s_sub_u32", sr(sSOFF), sr(sXOFF), "1344")
    sch, _ = schedule(c.ins)
    b.ins.extend(sch)
    set_exec(b, 0xffffffff)
    for nt in range(2):
        b.dsw("ds_write_b16", vV3W, a + 12 + 4 * nt, 1, 256 + 8 * nt)
        b.dsw("ds_write_b16_d16_hi", vV3W, a + 12 + 4 * nt, 1, EST + 256 + 8 * nt)
    set_exec(b, 0xffff)
    for nt in range(2):
        b.dsw("ds_write_b16", vV3W, a + 13 + 4 * nt, 1, 2 * EST + 256 + 8 * nt)
        b.dsw("ds_write_b16_d16_hi", vV3W, a + 13 + 4 * nt, 1, 3 * EST + 256 + 8 * nt)
    set_exec(b, lmask(lambda n, g: n < 6))
    b.dsw("ds_write_b128", vQ3W, QT + 12, 4, 0)
    b.dsw("ds_write_b128", vQ3W, KT + 12, 4, 64)
    b.smov("exec", "-1")
    b.fence()
    b.raw("s_barrier", "barrier")
    return b


def main_loop(tail):
    b = Block()
    b.label("L_loop")
    stamp(b, T, T + 1)
    if PRIO:
        b.salu("s_add_u32", sr(sT), sr(sGR), sr(sI))
        b.salu("s_and_b32", sr(sT), sr(sT), "1")
        b.branch("s_cbranch_scc1", "L_pr1")
        b.raw("s_setprio 0")
        b.branch("s_branch", "L_pr2")
        b.label("L_pr1")
        b.raw("s_setprio 1")
        b.label("L_pr2")
    b.salu("s_add_u32", sr(sTILE), sr(sH), sr(sI))
    b.salu("s_add_u32", sr(sTILE), sr(sTILE), "3")
    b.salu("s_and_b32", sr(sTILE), sr(sTILE), "3")
    b.valu("v_subrev_u32", vr(vWO), sr(sXB), vr(vXADDR))
    b.salu("s_add_u32", sr(sXOFF), sr(sXOFF), "1344")
    b.valu("v_lshrrev_b32", vr(PT + 1), "2", vr(vWO))
    b.scmp("s_cmp_eq_u32", sr(sTILE), "3")
    b.branch("s_cbranch_scc1", "L_t3")
    b.scmp("s_cmp_eq_u32", sr(sI), "0")
    b.branch("s_cbranch_scc1", "L_nop2")
    b.salu("s_mul_i32", sr(sT), sr(sTILE), "3072", scc=False)
    b.salu("s_add_u32", sr(sT), sr(sT), sr(sDOB))
    b.salu("s_sub_u32", sr(sT), sr(sT), sr(sO64))
    b.valu("v_add_u32", vr(vOR), sr(sT), vr(vOW64))
    b.salu("s_lshl_b32", sr(sT1), sr(sTILE), "8")
    b.salu("s_add_u32", sr(sT1), sr(sT1), sr(sOFFS))
    b.scmp("s_cmp_lt_u32", sr(sI), "6")
    b.branch("s_cbranch_scc1", "L_p2go")
    b.smov(sr(sSOFF), "0")
    b.salu("s_add_u32", sr(sT1), sr(sT1), "1024")
    b.label("L_p2go")
    b.valu("v_add_u32", vr(PT + 1), sr(sT1), vr(PT + 1))
    b.valu("v_add_u32", vr(vWO), str(WOF), vr(vWO))
    sch, t2 = schedule(phase2().ins)
    b.ins.extend(sch)
    b.scmp("s_cmp_eq_u32", sr(sI), "6")
    b.branch("s_cbranch_scc1", "L_fin" if STAMPS else "L_end")
    b.label("L_nop2")
    stamp(b, T, T + 1, lvl=2)
    b.salu("s_lshl_b64", sr(sEX, 2), sr(sM1, 2), sr(sI))
    b.scmp("s_cmp_eq_u32", sr(sI), "5")
    b.branch("s_cbranch_scc1", "L_pads5")
    b.label("L_p1")
    b.scmp("s_cmp_lg_u32", sr(sSLOW), "0")
    b.branch("s_cbranch_scc1", "L_p1slow")
    p1 = phase1(False)
    sch, t1 = schedule(p1.ins)
    b.ins.extend(sch)
    b.label("L_p1done")
    stamp(b, T, T + 1, lvl=2)
    b.valu("v_add_u32", vr(vXADDR), sr(sDXB), vr(vXADDR))
    b.valu("v_add_u32", vr(vOW64), sr(sDOB), vr(vOW64))
    b.valu("v_add_u32", vr(vOW32), sr(sDOB), vr(vOW32))
    b.valu("v_add_u32", vr(vE3A), str(EST), vr(vE3A))
    b.valu("v_add_u32", vr(vPV), str(EST), vr(vPV))
    b.salu("s_add_u32", sr(sXB), sr(sXB), sr(sDXB))
    b.salu("s_sub_u32", sr(sDXB), "0", sr(sDXB))
    b.salu("s_sub_u32", sr(sDOB), "0", sr(sDOB))
    b.salu("s_add_u32", sr(sSOFF), sr(sSOFF), "1344")
    b.salu("s_add_u32", sr(sI), sr(sI), "1")
    b.scmp("s_cmp_lg_u32", sr(sTILE), "3")
    b.branch("s_cbranch_scc1", "L_now")
    b.wait("vmcnt(0)")
    b.label("L_now")
    b.salu("s_add_u32", sr(sCNT), sr(sCNT), "4")
    mov(b, T, "1")
    b.smov("exec", "1")
    b.add(I(f"ds_add_u32 {vr(vSYNC)}, {vr(T)}", "dsw", V(vSYNC) + V(T), []))
    b.smov("exec", "-1")
    b.add(I("L_spin:", "label"))
    b.dsr("ds_read_b32", T + 1, 1, vSYNC, 0)
    b.readfirstlane(sr(sT), vr(T + 1))
    b.scmp("s_cmp_ge_u32", sr(sT), sr(sCNT))
    b.branch("s_cbranch_scc1", "L_loop")
    b.raw("s_sleep 1")
    b.branch("s_branch", "L_spin")
    b.label("L_t3")
    b.scmp("s_cmp_eq_u32", sr(sI), "6")
    b.branch("s_cbranch_scc1", "L_p2x")
    b.scmp("s_cmp_eq_u32", sr(sI), "5")
    b.branch("s_cbranch_scc1", "L_nop2")
    b.smov(sr(sT1), sr(sOFFS))
    b.smov(sr(sT), sr(sXOFF))
    b.scmp("s_cmp_lg_u32", sr(sI), "4")
    b.branch("s_cbranch_scc1", "L_nob")
    b.salu("s_add_u32", sr(sT1), sr(sOFFS), "1024")
    b.smov(sr(sT), "0")
    b.label("L_nob")
    b.valu("v_add_u32", vr(PT + 1), sr(sT1), vr(PT + 1))
    for t in range(3):
        b.dsr("ds_read_b32", T + t, 1, PT + 1, 256 * t)
    b.salu("s_add_u32", "m0", sr(sXB), sr(sDXB))
    b.salu("s_add_u32", sr(sT2), sr(sT), "64")
    b.salu("s_add_u32", sr(sT3), sr(sT), "128")
    for t in range(3):
        for ks in range(3):
            b.dma(T + t, sX, sr((sT, sT2, sT3)[ks]))
            if (t, ks) != (2, 2):
                b.salu("s_add_u32", "m0", "m0", "1024")
    b.branch("s_branch", "L_nop2")
    b.label("L_p2x")
    b.smov(sr(sSOFF), "0")
    b.salu("s_add_u32", sr(sT1), sr(sOFFS), "768")
    b.salu("s_add_u32", sr(sT), sr(sOBG), str(OB0 + 3 * 3072))
    b.valu("v_lshrrev_b32", vr(PT), "4", vr(vWO))
    b.valu("v_mul_u32_u24", vr(vOR), "48", vr(PT))
    b.valu("v_and_b32", vr(PT), "1", vr(PT))
    b.valu("v_mul_u32_u24", vr(PT), str(OBD), vr(PT))
    b.valu("v_add_u32", vr(vOR), vr(vOR), vr(PT))
    b.valu("v_add_u32", vr(vOR), sr(sT), vr(vOR))
    b.branch("s_branch", "L_p2go")
    if STAMPS:
        b.label("L_fin")
        stamp(b, T, T + 1)
        b.wait("vmcnt(0)")
        stamp(b, T, T + 1)
        stamp(b, T, T + 1, real=True)
        b.sload(56, 2, 0, 88)
        b.wait("lgkmcnt(0)")
        b.smov(sr(58), "0x10000000")
        b.smov(sr(59), "0x00020000")
        lane_ngl(b, T, T + 1, T + 2)
        b.valu("v_lshlrev_b32", vr(T), "2", vr(T))
        b.salu("s_lshl_b32", sr(sT), sr(sWV), "7")
        b.salu("s_add_u32", sr(sT1), sr(sT), str(DBGL))
        b.salu("s_lshl_b32", sr(sT), sr(sH), "7")
        b.valu("v_add_u32", vr(T + 1), sr(sT1), vr(T))
        b.dsr("ds_read_b32", T + 2, 1, T + 1, 0)
        b.salu("s_lshl_b32", sr(sT1), "s2", "9")
        b.salu("s_add_u32", sr(sT), sr(sT), sr(sT1))
        set_exec(b, 0xffffffff)
        b.bstore(T + 2, 1, T, 56, sr(sT))
        b.wait("vmcnt(0)")
    b.label("L_end")
    b.raw("s_endpgm", "end")
    tail.label("L_pads5")
    tail.scmp("s_cmp_eq_u32", sr(sFX5), "0")
    tail.branch("s_cbranch_scc1", "L_p1")
    lane_ngl(tail, T, T + 1, T + 2)
    set_pads(tail, T + 1, T + 2, T + 3, sr(sFX5), False)
    tail.branch("s_branch", "L_p1")
    tail.label("L_p1slow")
    sch, t1s = schedule(phase1(True).ins)
    tail.ins.extend(sch)
    tail.branch("s_branch", "L_p1done")
    print(f"; est cycles: phase1 {t1} slow {t1s} phase2 {t2}", file=sys.stderr)
    return b


HEADER = open("standalone__window_attn_swin_v2__vision.s.ref").read().split("; Override launch")[0]


def build():
    tail = Block()
    b = setup(tail)
    b.extend(main_loop(tail))
    b.extend(tail)
    ins, nops = finalize(b.ins)
    print(f"; instructions {sum(1 for i in ins if i.kind not in ('label','comment','fence'))} nop-states {nops}", file=sys.stderr)
    body = render(ins)
    txt = HEADER + f"""; Generated by work/gen3.py (hand-written generator): workgroup = 2 groups of 4 waves (4 heads), 6 windows per group.
; @launch grid=({NWG},1,1) block=(512,1,1) lds={LDS_BYTES + (1024 if STAMPS else 0)}
.amdgcn_target "amdgcn-amd-amdhsa--gfx950"
.text
.globl {KNAME}
.p2align 8
.type {KNAME},@function
{KNAME}:
{body}
.section .rodata,"a"
.p2align 6
.amdhsa_kernel {KNAME}
  .amdhsa_next_free_vgpr {NVGPR}
  .amdhsa_next_free_sgpr {NSGPR}
  .amdhsa_accum_offset {NVGPR}
  .amdhsa_group_segment_fixed_size 0
  .amdhsa_kernarg_size 96
  .amdhsa_user_sgpr_count 2
  .amdhsa_user_sgpr_kernarg_segment_ptr 1
  .amdhsa_system_sgpr_workgroup_id_x 1
.end_amdhsa_kernel
"""
    return txt


if __name__ == "__main__":
    out = sys.argv[1] if len(sys.argv) > 1 else "standalone__window_attn_swin_v2__vision.s"
    open(out, "w").write(build())
```
